```python
import torch

def _softmax(x, axis=-1):
    return torch.softmax(x, dim=axis)
def _gelu(x):
    return torch.nn.functional.gelu(x, approximate="tanh")
def _silu(x):
    return torch.nn.functional.silu(x)
def _sigmoid(x):
    return torch.sigmoid(x)
def _layernorm(x, axis=-1, eps=1e-5):
    m = x.mean(dim=axis, keepdim=True)
    v = x.var(dim=axis, keepdim=True, unbiased=False)
    return (x - m) / torch.sqrt(v + eps)
def _scatter_add(tgt, idx, src, axis=0):
    return tgt.clone().index_add_(axis, idx, src)
def _segment_sum(src, seg, n):
    out = torch.zeros((n,) + src.shape[1:], dtype=src.dtype)
    return out.index_add_(0, seg, src)
def _pad(x, pw):
    flat = tuple(v for pair in reversed(pw) for v in pair)
    return torch.nn.functional.pad(x, flat)

kernel_name = 'concat_heads__gqa_block_cached__mha_block_cached__decode'

def setup_inputs():

    _w = (lambda a: (lambda t: t.to(torch.bfloat16) if t.is_floating_point() else t)(torch.as_tensor(a)))
    def _A_setup():
        B, Sq, D = 2, 1, 576
        Hq, Hkv, Sk, Dh = 32, 16, 8192, 128
        assert Hq % Hkv == 0, (Hq, Hkv)
        return {
            "x": _w((lambda *s: torch.randn(*s, dtype=torch.bfloat16) * 0.8)(B, Sq, D)),
            "k_cache": _w((lambda *s: torch.randn(*s, dtype=torch.bfloat16) * 0.8)(B, Hkv, Sk, Dh)),
            "v_cache": _w((lambda *s: torch.randn(*s, dtype=torch.bfloat16) * 0.05)(B, Hkv, Sk, Dh)),
            "wq": _w((lambda *s: torch.randn(*s, dtype=torch.bfloat16) * 0.8)(D, Hq * Dh) * (D ** -0.5)),
            "wo": _w((lambda *s: torch.randn(*s, dtype=torch.bfloat16) * 0.05)(Hq * Dh, D) * ((Hq * Dh) ** -0.5)),
        }
    _A_in = _A_setup()

    def _B_setup():
        B, Sq, D = 2, 1, 576
        H, Sk, Dh = 32, 8192, 128
        return {
            "x": _w((lambda *s: torch.randn(*s, dtype=torch.bfloat16) * 0.8)(B, Sq, D)),
            "k_cache": _w((lambda *s: torch.randn(*s, dtype=torch.bfloat16) * 0.8)(B, H, Sk, Dh)),
            "v_cache": _w((lambda *s: torch.randn(*s, dtype=torch.bfloat16) * 0.05)(B, H, Sk, Dh)),
            "wq": _w((lambda *s: torch.randn(*s, dtype=torch.bfloat16) * 0.8)(D, H * Dh) * (D ** -0.5)),
            "wo": _w((lambda *s: torch.randn(*s, dtype=torch.bfloat16) * 0.05)(H * Dh, D) * ((H * Dh) ** -0.5)),
        }
    _B_in = _B_setup()

    return {
        "A_x": _A_in["x"],
        "A_k_cache": _A_in["k_cache"],
        "A_v_cache": _A_in["v_cache"],
        "A_wq": _A_in["wq"],
        "A_wo": _A_in["wo"],
        "B_x": _B_in["x"],
        "B_k_cache": _B_in["k_cache"],
        "B_v_cache": _B_in["v_cache"],
        "B_wq": _B_in["wq"],
        "B_wo": _B_in["wo"],
    }

def reference(A_x, A_k_cache, A_v_cache, A_wq, A_wo, B_x, B_k_cache, B_v_cache, B_wq, B_wo):
    def _A_ref(x, k_cache, v_cache, wq, wo):
        B, Sq, D = x.shape
        Hq, Dh = 32, 128
        Hkv = k_cache.shape[1]
        rep = Hq // Hkv
        q = (lambda x, *d: x.permute(*d))((x @ wq).reshape(B, Sq, Hq, Dh), 0, 2, 1, 3)
        k = (lambda x, n, axis: torch.repeat_interleave(x, n, dim=axis))(k_cache, rep, axis=1)
        v = (lambda x, n, axis: torch.repeat_interleave(x, n, dim=axis))(v_cache, rep, axis=1)
        scores = torch.einsum("bhqd,bhkd->bhqk", q, k) * (Dh ** -0.5)
        p = _softmax(scores, axis=-1)
        o = torch.einsum("bhqk,bhkd->bhqd", p, v)
        return (lambda x, *d: x.permute(*d))(o, 0, 2, 1, 3).reshape(B, Sq, Hq * Dh) @ wo

    def _B_ref(x, k_cache, v_cache, wq, wo):
        B, Sq, D = x.shape
        H, Dh = 32, 128
        q = (lambda x, *d: x.permute(*d))((x @ wq).reshape(B, Sq, H, Dh), 0, 2, 1, 3)
        scores = torch.einsum("bhqd,bhkd->bhqk", q, k_cache) * (Dh ** -0.5)
        p = _softmax(scores, axis=-1)
        o = torch.einsum("bhqk,bhkd->bhqd", p, v_cache)
        return (lambda x, *d: x.permute(*d))(o, 0, 2, 1, 3).reshape(B, Sq, H * Dh) @ wo

    a = _A_ref(A_x, A_k_cache, A_v_cache, A_wq, A_wo)
    b = _B_ref(B_x, B_k_cache, B_v_cache, B_wq, B_wo)
    return torch.concatenate([a, b], axis=-1)
```

```python
import sys, struct, argparse, math

KN = "concat_heads__gqa_block_cached__mha_block_cached__decode_kernel"

def f2u(x):
    return struct.unpack("<I", struct.pack("<f", x))[0]

class G:
    def __init__(self):
        self.L = []
    def e(self, s):
        self.L.append("    " + s)
    def c(self, s):
        self.L.append("    ; " + s)
    def lab(self, s):
        self.L.append(s + ":")
    def nop(self, n):
        while n > 0:
            k = min(n, 16)
            self.e(f"s_nop {k-1}")
            n -= k
    def text(self):
        return "\n".join(self.L) + "\n"

def vr(a, n):
    return f"v[{a}:{a+n-1}]" if n > 1 else f"v{a}"
def sr(a, n):
    return f"s[{a}:{a+n-1}]" if n > 1 else f"s{a}"

CSCALE = math.log2(math.e) / math.sqrt(128.0)
NEG = f2u(-3.0e38)

Y_OFF = 0
ML_OFF = 0x100000
WS_BYTES = 0x200000

def gen(kpat="mfma", ld="nt", wld="", skipq=False, skipo=False):
    g = G()
    e, c, lab, nop = g.e, g.c, g.lab, g.nop
    vTID, vLANE, vOFFK, vOFFV = 0, 1, 2, 3
    vM = 4
    vO = 8
    vMX, vL = 12, 13
    vS = 14
    vB0, vB1 = 18, 22
    vT = 26
    vQ = 32
    vBUF = [48, 80]
    vW = [112, 184]
    sW = 3
    sK, sV, sWQ, sWO, sX, sWS = 4, 8, 12, 16, 20, 24
    sCUR, sSTR, sEND, sCNT, sTMP = 28, 29, 30, 31, 32
    sISB, sSTRAD, sC = 33, 34, 35
    sP = 36
    sHEAD, sBSEL, sY0, sY1, sKVSZ = 62, 63, 64, 65, 66
    sA, sB_, sC_, sD = 67, 68, 69, 78
    sMLO, sMHI, sEX = 70, 72, 74
    sSELLO, sSELHI = 76, 77
    sPM = [80, 82]
    sMLM = [84, 86]
    sYM = 88
    sT2 = 90
    sNEG = 92

    ldf = (" " + ld) if ld else ""
    wldf = (" " + wld) if wld else ""

    QP, QF = 0, 16384
    OL, MLL, YI = 0, 10752, 20480
    LDS = 61440

    lab(KN)
    e("s_cmp_ge_u32 s2, 256")
    e("s_cbranch_scc1 L_end")
    e(f"s_load_dwordx16 {sr(sP,16)}, s[0:1], 0")
    e(f"s_load_dwordx8 {sr(sP+16,8)}, s[0:1], 64")
    e(f"s_load_dwordx2 {sr(sP+24,2)}, s[0:1], 96")
    e(f"v_and_b32 v{vLANE}, 63, v0")
    e(f"v_lshrrev_b32 v{vT}, 6, v0")
    e("s_nop 0")
    e(f"v_readfirstlane_b32 s{sW}, v{vT}")
    c("partition: xcd = wg&7, slot = wg>>3")
    e(f"s_and_b32 s{sA}, s2, 7")
    e(f"s_lshr_b32 s{sB_}, s2, 3")
    e(f"s_mov_b32 s{sC}, 0x{f2u(CSCALE):08x}")
    e(f"s_mov_b32 s{sNEG}, 0x{NEG:08x}")
    e(f"s_mov_b32 s{sSELLO}, 0x01000100")
    e(f"s_mov_b32 s{sSELHI}, 0x03020302")
    e(f"s_mov_b32 s{sSTRAD}, 0")
    e(f"s_mov_b64 {sr(sMLO,2)}, -1")
    e(f"s_mov_b64 {sr(sMHI,2)}, -1")
    e(f"s_cmp_ge_u32 s{sB_}, 12")
    e("s_cbranch_scc1 L_setB")
    c("model A: kvh = 2*xcd + (slot>=6); r = slot%6; b = r>=3; part = r%3")
    e(f"s_mov_b32 s{sISB}, 0")
    e(f"s_lshl_b32 s{sA}, s{sA}, 1")
    e(f"s_cmp_ge_u32 s{sB_}, 6")
    e(f"s_cselect_b32 s{sC_}, 1, 0")
    e(f"s_add_u32 s{sA}, s{sA}, s{sC_}")
    e(f"s_mul_i32 s{sC_}, s{sC_}, 6")
    e(f"s_sub_u32 s{sB_}, s{sB_}, s{sC_}")
    e(f"s_cmp_ge_u32 s{sB_}, 3")
    e(f"s_cselect_b32 s{sBSEL}, 1, 0")
    e(f"s_mul_i32 s{sC_}, s{sBSEL}, 3")
    e(f"s_sub_u32 s{sB_}, s{sB_}, s{sC_}")
    e(f"s_lshl_b32 s{sHEAD}, s{sA}, 1")
    c("unit = b*16+kvh ; tile range [171*part, min(171*part+171,512))")
    e(f"s_lshl_b32 s{sC_}, s{sBSEL}, 4")
    e(f"s_add_u32 s{sC_}, s{sC_}, s{sA}")
    e(f"s_lshl_b32 s{sC_}, s{sC_}, 9")
    e(f"s_mul_i32 s{sCUR}, s{sB_}, 171")
    e(f"s_add_u32 s{sEND}, s{sCUR}, 171")
    e(f"s_min_u32 s{sEND}, s{sEND}, 512")
    e(f"s_add_u32 s{sCUR}, s{sCUR}, s{sW}")
    e(f"s_mov_b32 s{sSTR}, 3")
    c("yrow(cs) = ((b*32) + head0 + cs)*3 + part")
    e(f"s_lshl_b32 s{sD}, s{sBSEL}, 5")
    e(f"s_add_u32 s{sD}, s{sD}, s{sHEAD}")
    e(f"s_mul_i32 s{sY0}, s{sD}, 3")
    e(f"s_add_u32 s{sY0}, s{sY0}, s{sB_}")
    e(f"s_add_u32 s{sY1}, s{sY0}, 3")
    e(f"s_mov_b32 s{sKVSZ}, 0x4000000")
    e(f"s_mov_b32 s{sPM[0]}, 0x00ff00ff")
    e(f"s_mov_b32 s{sPM[0]+1}, 0x00ff00ff")
    e(f"s_mov_b32 s{sPM[1]}, 0xff00ff00")
    e(f"s_mov_b32 s{sPM[1]+1}, 0xff00ff00")
    e(f"s_mov_b64 {sr(sMLM[0],2)}, 1")
    e(f"s_mov_b32 s{sMLM[1]}, 0x100")
    e(f"s_mov_b32 s{sMLM[1]+1}, 0")
    e(f"s_mov_b64 {sr(sYM,2)}, -1")
    e("s_waitcnt lgkmcnt(0)")
    for (dst, src) in ((sX, 0), (sK, 2), (sV, 4), (sWQ, 6), (sWO, 8)):
        e(f"s_mov_b32 s{dst}, s{sP+src}")
        e(f"s_mov_b32 s{dst+1}, s{sP+src+1}")
    e("s_branch L_setdone")
    lab("L_setB")
    c("model B: s'=slot-12; hq=s'/5; part=s'%5; h=4*xcd+hq")
    e(f"s_mov_b32 s{sISB}, 1")
    e(f"s_sub_u32 s{sB_}, s{sB_}, 12")
    e(f"s_mul_i32 s{sC_}, s{sB_}, 52")
    e(f"s_lshr_b32 s{sC_}, s{sC_}, 8")
    e(f"s_lshl_b32 s{sA}, s{sA}, 2")
    e(f"s_add_u32 s{sHEAD}, s{sA}, s{sC_}")
    e(f"s_mul_i32 s{sC_}, s{sC_}, 5")
    e(f"s_sub_u32 s{sB_}, s{sB_}, s{sC_}")
    e(f"s_mov_b32 s{sKVSZ}, 0x8000000")
    e(f"s_mov_b64 {sr(sPM[0],2)}, -1")
    e(f"s_mov_b64 {sr(sPM[1],2)}, -1")
    e(f"s_mov_b64 {sr(sMLM[0],2)}, 1")
    e(f"s_mov_b64 {sr(sMLM[1],2)}, 0")
    e(f"s_mov_b32 s{sYM}, 0x00ff00ff")
    e(f"s_mov_b32 s{sYM+1}, 0x00ff00ff")
    e(f"s_cmp_eq_u32 s{sB_}, 2")
    e("s_cbranch_scc1 L_setBs")
    c("non-straddler: b = part>=3; T0 = 205*part - (part>=3) - 512*b; T1 = T0+205; j = part - 2*b")
    e(f"s_cmp_ge_u32 s{sB_}, 3")
    e(f"s_cselect_b32 s{sBSEL}, 1, 0")
    e(f"s_mul_i32 s{sCUR}, s{sB_}, 205")
    e(f"s_mul_i32 s{sC_}, s{sBSEL}, 513")
    e(f"s_sub_u32 s{sCUR}, s{sCUR}, s{sC_}")
    e(f"s_add_u32 s{sEND}, s{sCUR}, 205")
    e(f"s_add_u32 s{sCUR}, s{sCUR}, s{sW}")
    e(f"s_mov_b32 s{sSTR}, 3")
    e(f"s_lshl_b32 s{sC_}, s{sBSEL}, 1")
    e(f"s_sub_u32 s{sB_}, s{sB_}, s{sC_}")
    e(f"s_add_u32 s{sD}, s{sBSEL}, 2")
    e(f"s_lshl_b32 s{sD}, s{sD}, 5")
    e(f"s_add_u32 s{sD}, s{sD}, s{sHEAD}")
    e(f"s_mul_i32 s{sY0}, s{sD}, 3")
    e(f"s_add_u32 s{sY0}, s{sY0}, s{sB_}")
    e(f"s_mov_b32 s{sY1}, s{sY0}")
    e("s_branch L_setB2")
    lab("L_setBs")
    c("straddler: waves 0-3: b=0 tiles [410,512); waves 4-7: b=1 tiles [0,102); stride 4")
    e(f"s_mov_b32 s{sSTRAD}, 1")
    e(f"s_lshr_b32 s{sBSEL}, s{sW}, 2")
    e(f"s_and_b32 s{sC_}, s{sW}, 3")
    e(f"s_cmp_eq_u32 s{sBSEL}, 0")
    e(f"s_cselect_b32 s{sCUR}, 410, 0")
    e(f"s_add_u32 s{sEND}, s{sCUR}, 102")
    e(f"s_add_u32 s{sCUR}, s{sCUR}, s{sC_}")
    e(f"s_mov_b32 s{sSTR}, 2")
    e(f"s_add_u32 s{sD}, s{sHEAD}, 64")
    e(f"s_mul_i32 s{sY0}, s{sD}, 3")
    e(f"s_add_u32 s{sY0}, s{sY0}, 2")
    e(f"s_add_u32 s{sY1}, s{sY0}, 94")
    e(f"s_mov_b32 s{sMLO}, 0x00ff00ff")
    e(f"s_mov_b32 s{sMLO+1}, 0x00ff00ff")
    e(f"s_mov_b32 s{sMHI}, 0xff00ff00")
    e(f"s_mov_b32 s{sMHI+1}, 0xff00ff00")
    e(f"s_mov_b32 s{sMLM[0]}, 0x101")
    e(f"s_mov_b64 {sr(sYM,2)}, -1")
    lab("L_setB2")
    e(f"s_lshl_b32 s{sC_}, s{sBSEL}, 5")
    e(f"s_add_u32 s{sC_}, s{sC_}, s{sHEAD}")
    e(f"s_lshl_b32 s{sC_}, s{sC_}, 9")
    e("s_waitcnt lgkmcnt(0)")
    for (dst, src) in ((sX, 10), (sK, 12), (sV, 14), (sWQ, 16), (sWO, 18)):
        e(f"s_mov_b32 s{dst}, s{sP+src}")
        e(f"s_mov_b32 s{dst+1}, s{sP+src+1}")
    lab("L_setdone")
    c("count = (end - first + stride-1) >> log2stride ; byte offsets")
    e(f"s_sub_u32 s{sCNT}, s{sEND}, s{sCUR}")
    e(f"s_lshl_b32 s{sD}, 1, s{sSTR}")
    e(f"s_add_u32 s{sCNT}, s{sCNT}, s{sD}")
    e(f"s_sub_u32 s{sCNT}, s{sCNT}, 1")
    e(f"s_lshr_b32 s{sCNT}, s{sCNT}, s{sSTR}")
    e(f"s_add_u32 s{sCUR}, s{sCUR}, s{sC_}")
    e(f"s_add_u32 s{sEND}, s{sEND}, s{sC_}")
    e(f"s_lshl_b32 s{sCUR}, s{sCUR}, 12")
    e(f"s_lshl_b32 s{sEND}, s{sEND}, 12")
    e(f"s_lshl_b32 s{sSTR}, s{sD}, 12")
    e(f"s_mov_b32 s{sK+2}, s{sKVSZ}")
    e(f"s_mov_b32 s{sV+2}, s{sKVSZ}")
    e(f"s_mov_b32 s{sWQ+2}, {576*4096*2}")
    e(f"s_mov_b32 s{sWO+2}, {576*4096*2}")
    e(f"s_mov_b32 s{sX+2}, {2*576*2}")
    e(f"s_mov_b32 s{sWS}, s{sP+24}")
    e(f"s_mov_b32 s{sWS+1}, s{sP+25}")
    e(f"s_mov_b32 s{sWS+2}, {WS_BYTES}")
    for s in (sK, sV, sWQ, sWO, sX, sWS):
        e(f"s_mov_b32 s{s+3}, 0x00020000")
    vI, vG = vT, vT + 1
    e(f"v_and_b32 v{vI}, 15, v{vLANE}")
    e(f"v_lshrrev_b32 v{vG}, 4, v{vLANE}")
    c("voffV = g*1024 + i*16")
    e(f"v_lshlrev_b32 v{vOFFV}, 10, v{vG}")
    e(f"v_lshl_add_u32 v{vOFFV}, v{vI}, 4, v{vOFFV}")
    if kpat == "mfma":
        c("voffK = i*256 + g*16")
        e(f"v_lshlrev_b32 v{vOFFK}, 8, v{vI}")
        e(f"v_lshl_add_u32 v{vOFFK}, v{vG}, 4, v{vOFFK}")
    else:
        e(f"v_mov_b32 v{vOFFK}, v{vOFFV}")
    vXO, vWO_ = vT + 2, vT + 3
    if not skipq:
        c("row0 = 72*w + 18*g ; voffX = (n>>3)*1152 + row0*2 ; voffWQ = row0*8192 + i*16 + head*256")
        e(f"s_mul_i32 s{sA}, s{sW}, 72")
        e(f"v_mul_u32_u24 v{vT+4}, 18, v{vG}")
        e(f"v_add_u32 v{vT+4}, s{sA}, v{vT+4}")
        e(f"v_lshrrev_b32 v{vXO}, 3, v{vI}")
        e(f"v_mul_u32_u24 v{vXO}, 1152, v{vXO}")
        e(f"v_lshl_add_u32 v{vXO}, v{vT+4}, 1, v{vXO}")
        e(f"v_lshlrev_b32 v{vWO_}, 13, v{vT+4}")
        e(f"v_lshl_add_u32 v{vWO_}, v{vI}, 4, v{vWO_}")
        e(f"s_lshl_b32 s{sA}, s{sHEAD}, 8")
        e(f"v_add_u32 v{vWO_}, s{sA}, v{vWO_}")
        e(f"buffer_load_dwordx4 {vr(vQ,4)}, v{vXO}, {sr(sX,4)}, 0 offen")
        e(f"buffer_load_dwordx4 {vr(vQ+4,4)}, v{vXO}, {sr(sX,4)}, 0 offen offset:16")
        e(f"buffer_load_dword v{vQ+8}, v{vXO}, {sr(sX,4)}, 0 offen offset:32")
        e(f"s_mov_b32 s{sTMP}, 0")
        for j in range(18):
            e(f"buffer_load_dwordx4 {vr(vW[0]+4*j,4)}, v{vWO_}, {sr(sWQ,4)}, s{sTMP} offen{wldf}")
            if j < 17:
                e(f"s_add_u32 s{sTMP}, s{sTMP}, 8192")
        e(f"s_cmp_eq_u32 s{sISB}, 1")
        e("s_cbranch_scc1 L_wq1done")
        e(f"s_mov_b32 s{sTMP}, 0")
        for j in range(18):
            e(f"buffer_load_dwordx4 {vr(vW[1]+4*j,4)}, v{vWO_}, {sr(sWQ,4)}, s{sTMP} offen offset:256{wldf}")
            if j < 17:
                e(f"s_add_u32 s{sTMP}, s{sTMP}, 8192")
        lab("L_wq1done")

    def loadK(b):
        for s in range(4):
            off = s * 64 if kpat == "mfma" else s * 256
            e(f"buffer_load_dwordx4 {vr(vBUF[b]+4*s,4)}, v{vOFFK}, {sr(sK,4)}, s{sCUR} offen offset:{off}{ldf}")
    def loadV(b):
        for r in range(4):
            e(f"buffer_load_dwordx4 {vr(vBUF[b]+16+4*r,4)}, v{vOFFV}, {sr(sV,4)}, s{sCUR} offen offset:{r*256}{ldf}")
    c("prefetch tiles 0,1 (always valid)")
    loadK(0); loadV(0)
    e(f"s_add_u32 s{sCUR}, s{sCUR}, s{sSTR}")
    loadK(1); loadV(1)
    e(f"s_add_u32 s{sCUR}, s{sCUR}, s{sSTR}")
    c("lane masks")
    e(f"v_and_b32 v{vT+4}, 1, v{vI}")
    e(f"v_lshlrev_b32 v{vT+4}, 4, v{vT+4}")
    e(f"v_mov_b32 v{vT+5}, 0xffff")
    e(f"v_lshlrev_b32 v{vT+5}, v{vT+4}, v{vT+5}")
    e(f"v_bfe_u32 v{vT+4}, v{vI}, 1, 2")
    for r in range(4):
        e(f"v_cmp_eq_u32 vcc, {r}, v{vT+4}")
        nop(2)
        e(f"v_cndmask_b32 v{vM+r}, 0, v{vT+5}, vcc")
    for r in range(4):
        e(f"v_mov_b32 v{vO+r}, 0")
    e(f"v_mov_b32 v{vMX}, s{sNEG}")
    e(f"v_mov_b32 v{vL}, 0")

    if not skipq:
        c("---- q projection")
        e("s_waitcnt vmcnt(16)")
        def qpass(hp, dst):
            for j in range(18):
                B = vB0 if j % 2 == 0 else vB1
                sel = sSELLO if j % 2 == 0 else sSELHI
                e(f"v_perm_b32 v{vT+4}, v{vQ+j//2}, v{vQ+j//2}, s{sel}")
                for r in range(4):
                    e(f"v_and_b32 v{B+r}, v{vT+4}, v{vM+r}")
                nop(2)
                src = "0" if j == 0 else vr(dst, 4)
                e(f"v_mfma_f32_16x16x32_bf16 {vr(dst,4)}, {vr(vW[hp]+4*j,4)}, {vr(B,4)}, {src}")
        qpass(0, vS)
        c("lds addr = (w*2+hp)*1024 + lane*16")
        e(f"s_lshl_b32 s{sA}, s{sW}, 11")
        e(f"v_lshlrev_b32 v{vT+5}, 4, v{vLANE}")
        e(f"v_add_u32 v{vT+5}, s{sA}, v{vT+5}")
        nop(8)
        e(f"ds_write_b128 v{vT+5}, {vr(vS,4)} offset:{QP}")
        e(f"s_cmp_eq_u32 s{sISB}, 1")
        e("s_cbranch_scc1 L_qp1done")
        qpass(1, vQ + 12)
        nop(8)
        e(f"ds_write_b128 v{vT+5}, {vr(vQ+12,4)} offset:{QP+1024}")
        lab("L_qp1done")
        e("s_waitcnt lgkmcnt(0)")
        e("s_barrier")
        c("stage 1: thread t sums slot t (hp=t>>8, slot=t&255) over 8 waves")
        e(f"v_lshrrev_b32 v{vT+4}, 8, v0")
        e(f"v_and_b32 v{vT+5}, 255, v0")
        e(f"v_lshlrev_b32 v{vT+2}, 10, v{vT+4}")
        e(f"v_lshl_add_u32 v{vT+2}, v{vT+5}, 2, v{vT+2}")
        for w in range(8):
            e(f"ds_read_b32 v{vQ+w}, v{vT+2} offset:{QP + w*2048}")
        c("dest: lane'=slot>>2, r=slot&3, n=lane'&15, g=lane'>>4; b=n>>3; d=8*(4g+r)+(n&7)")
        e(f"v_bfe_u32 v{vT+3}, v{vT+5}, 5, 1")
        e(f"v_lshl_add_u32 v{vT+3}, v{vT+4}, 1, v{vT+3}")
        e(f"v_lshlrev_b32 v{vT+3}, 7, v{vT+3}")
        e(f"v_bfe_u32 v{vT+4}, v{vT+5}, 6, 2")
        e(f"v_lshl_add_u32 v{vT+3}, v{vT+4}, 5, v{vT+3}")
        e(f"v_and_b32 v{vT+4}, 3, v{vT+5}")
        e(f"v_lshl_add_u32 v{vT+3}, v{vT+4}, 3, v{vT+3}")
        e(f"v_bfe_u32 v{vT+4}, v{vT+5}, 2, 3")
        e(f"v_add_u32 v{vT+3}, v{vT+4}, v{vT+3}")
        e(f"v_lshlrev_b32 v{vT+3}, 1, v{vT+3}")
        e("s_waitcnt lgkmcnt(0)")
        e(f"v_add_f32 v{vQ}, v{vQ}, v{vQ+1}")
        e(f"v_add_f32 v{vQ+2}, v{vQ+2}, v{vQ+3}")
        e(f"v_add_f32 v{vQ+4}, v{vQ+4}, v{vQ+5}")
        e(f"v_add_f32 v{vQ+6}, v{vQ+6}, v{vQ+7}")
        e(f"v_add_f32 v{vQ}, v{vQ}, v{vQ+2}")
        e(f"v_add_f32 v{vQ+4}, v{vQ+4}, v{vQ+6}")
        e(f"v_add_f32 v{vQ}, v{vQ}, v{vQ+4}")
        e(f"v_cvt_pk_bf16_f32 v{vQ}, v{vQ}, v{vQ}")
        e(f"ds_write_b16 v{vT+3}, v{vQ} offset:{QF}")
        e("s_waitcnt lgkmcnt(0)")
        e("s_barrier")
        c("q operand: hsel = isB ? 0 : n>>3")
        e(f"v_lshrrev_b32 v{vT+4}, 3, v{vI}")
        e(f"s_xor_b32 s{sA}, s{sISB}, 1")
        e(f"v_mul_u32_u24 v{vT+4}, s{sA}, v{vT+4}")
        if kpat == "mfma":
            c("addr = ((hsel*2+b)*128 + 8g)*2 (+64*s)")
            e(f"v_lshlrev_b32 v{vT+4}, 9, v{vT+4}")
            e(f"s_lshl_b32 s{sA}, s{sBSEL}, 8")
            e(f"v_add_u32 v{vT+4}, s{sA}, v{vT+4}")
            e(f"v_lshl_add_u32 v{vT+4}, v{vG}, 4, v{vT+4}")
            for s in range(4):
                e(f"ds_read_b128 {vr(vQ+4*s,4)}, v{vT+4} offset:{QF + 64*s}")
        else:
            c("qX: head hsel chunk i ; qY: head (isA ? 1-hsel : 0)")
            e(f"v_sub_u32 v{vT+5}, s{sA}, v{vT+4}")
            e(f"v_lshlrev_b32 v{vT+4}, 9, v{vT+4}")
            e(f"v_lshlrev_b32 v{vT+5}, 9, v{vT+5}")
            e(f"s_lshl_b32 s{sA}, s{sBSEL}, 8")
            e(f"v_add_u32 v{vT+4}, s{sA}, v{vT+4}")
            e(f"v_add_u32 v{vT+5}, s{sA}, v{vT+5}")
            e(f"v_lshl_add_u32 v{vT+4}, v{vI}, 4, v{vT+4}")
            e(f"v_lshl_add_u32 v{vT+5}, v{vI}, 4, v{vT+5}")
            e(f"ds_read_b128 {vr(vQ,4)}, v{vT+4} offset:{QF}")
            e(f"ds_read_b128 {vr(vQ+4,4)}, v{vT+5} offset:{QF}")
        e("s_waitcnt lgkmcnt(0)")
    else:
        for r in range(16):
            e(f"v_mov_b32 v{vQ+r}, 0x3c003c00")

    vWA, vWA5 = vT + 2, vT + 3
    c("voffWO = (head*128 + 16w + 4g)*1152 + i*16 ; voffWO5 = row*1152 + 1024 + i*8")
    e(f"s_lshl_b32 s{sA}, s{sHEAD}, 7")
    e(f"s_lshl_b32 s{sB_}, s{sW}, 4")
    e(f"s_add_u32 s{sA}, s{sA}, s{sB_}")
    e(f"v_lshlrev_b32 v{vWA}, 2, v{vG}")
    e(f"v_add_u32 v{vWA}, s{sA}, v{vWA}")
    e(f"v_mul_u32_u24 v{vWA}, 1152, v{vWA}")
    e(f"v_lshl_add_u32 v{vWA5}, v{vI}, 3, v{vWA}")
    e(f"v_add_u32 v{vWA5}, 1024, v{vWA5}")
    e(f"v_lshl_add_u32 v{vWA}, v{vI}, 4, v{vWA}")

    def loadWO(hp):
        for u in range(4):
            e(f"s_mov_b32 s{sTMP}, {hp*147456 + u*1152}")
            for cg in range(4):
                e(f"buffer_load_dwordx4 {vr(vW[hp]+18*u+4*cg,4)}, v{vWA}, {sr(sWO,4)}, s{sTMP} offen offset:{cg*256}{wldf}")
            e(f"buffer_load_dwordx2 {vr(vW[hp]+18*u+16,2)}, v{vWA5}, {sr(sWO,4)}, s{sTMP} offen{wldf}")

    t0, t1, t2, t3 = vT, vT + 1, vT + 4, vT + 5
    def iteration(b, w1, w2):
        K, V = vBUF[b], vBUF[b] + 16
        e(f"s_cmp_lt_u32 s{sCUR}, s{sEND}")
        e(f"s_cselect_b32 s{sK+2}, s{sKVSZ}, 0")
        e(f"s_cselect_b32 s{sV+2}, s{sKVSZ}, 0")
        e(f"s_waitcnt vmcnt({w1})")
        if kpat == "mfma":
            for s in range(4):
                src = "0" if s == 0 else vr(vS, 4)
                e(f"v_mfma_f32_16x16x32_bf16 {vr(vS,4)}, {vr(K+4*s,4)}, {vr(vQ+4*s,4)}, {src}")
            loadK(b)
            nop(8 - 4)
        else:
            for k in range(4):
                for r in range(4):
                    src = "0" if k == 0 else f"v{vS+r}"
                    e(f"v_dot2_f32_bf16 v{vS+r}, v{K+4*r+k}, v{vQ+k}, {src}")
                for r in range(4):
                    src = "0" if k == 0 else f"v{vB0+r}"
                    e(f"v_dot2_f32_bf16 v{vB0+r}, v{K+4*r+k}, v{vQ+4+k}, {src}")
            loadK(b)
            for r in range(4):
                e(f"v_add_f32_dpp v{vS+r}, v{vB0+r}, v{vS+r} row_ror:8 row_mask:0xf bank_mask:0xf")
            for pat in ("row_half_mirror", "quad_perm:[1,0,3,2]", "quad_perm:[2,3,0,1]"):
                for r in range(4):
                    e(f"v_add_f32_dpp v{vS+r}, v{vS+r}, v{vS+r} {pat} row_mask:0xf bank_mask:0xf")
        c("softmax")
        e(f"v_max3_f32 v{t0}, v{vS}, v{vS+1}, v{vS+2}")
        e(f"v_max3_f32 v{t0}, v{t0}, v{vS+3}, v{vMX}")
        e(f"v_mov_b32 v{t1}, v{t0}")
        nop(2)
        e(f"v_permlane16_swap_b32 v{t0}, v{t1}")
        nop(1)
        e(f"v_max_f32 v{t0}, v{t0}, v{t1}")
        e(f"v_mov_b32 v{t1}, v{t0}")
        nop(2)
        e(f"v_permlane32_swap_b32 v{t0}, v{t1}")
        nop(1)
        e(f"v_max_f32 v{t0}, v{t0}, v{t1}")
        e(f"v_sub_f32 v{t1}, v{vMX}, v{t0}")
        e(f"v_mul_f32 v{t1}, s{sC}, v{t1}")
        e(f"v_exp_f32 v{t1}, v{t1}")
        e(f"v_mov_b32 v{vMX}, v{t0}")
        e(f"v_mul_f32 v{t0}, s{sC}, v{t0}")
        for r in range(4):
            e(f"v_fma_f32 v{vS+r}, v{vS+r}, s{sC}, -v{t0}")
        for r in range(4):
            e(f"v_exp_f32 v{vS+r}, v{vS+r}")
        for r in range(4):
            e(f"v_mul_f32 v{vO+r}, v{t1}, v{vO+r}")
        e(f"v_add_f32 v{t2}, v{vS}, v{vS+1}")
        e(f"v_add_f32 v{t3}, v{vS+2}, v{vS+3}")
        e(f"v_fma_f32 v{vL}, v{vL}, v{t1}, v{t2}")
        e(f"v_add_f32 v{vL}, v{vL}, v{t3}")
        for r in range(4):
            e(f"v_cvt_pk_bf16_f32 v{vS+r}, v{vS+r}, v{vS+r}")
        e(f"s_waitcnt vmcnt({w2})")
        for r in range(4):
            B = vB0 if r % 2 == 0 else vB1
            for k in range(4):
                e(f"v_and_b32 v{B+k}, v{vS+r}, v{vM+k}")
            nop(2)
            e(f"v_mfma_f32_16x16x32_bf16 {vr(vO,4)}, {vr(V+4*r,4)}, {vr(B,4)}, {vr(vO,4)}")
        loadV(b)
        e(f"s_add_u32 s{sCUR}, s{sCUR}, s{sSTR}")

    c("---- peeled iterations")
    iteration(0, 12, 12)
    if not skipo:
        loadWO(0)
        X = 20
    else:
        X = 0
    iteration(1, 12 + X, 12 + X)
    if not skipo:
        e(f"s_cmp_eq_u32 s{sISB}, 1")
        e("s_cbranch_scc1 L_wo1done")
        loadWO(1)
        lab("L_wo1done")
    iteration(0, 12 + X, 12 + X)
    e(f"s_sub_u32 s{sCNT}, s{sCNT}, 3")
    lab("L_loop")
    iteration(1, 12, 12)
    e(f"s_sub_u32 s{sCNT}, s{sCNT}, 1")
    e(f"s_cmp_eq_u32 s{sCNT}, 0")
    e("s_cbranch_scc1 L_loopdone")
    iteration(0, 12, 12)
    e(f"s_sub_u32 s{sCNT}, s{sCNT}, 1")
    e(f"s_cmp_eq_u32 s{sCNT}, 0")
    e("s_cbranch_scc0 L_loop")
    lab("L_loopdone")
    c("---- tail: in-WG merge")
    e(f"v_mov_b32 v{t1}, v{vL}")
    nop(2)
    e(f"v_permlane16_swap_b32 v{vL}, v{t1}")
    nop(1)
    e(f"v_add_f32 v{vL}, v{vL}, v{t1}")
    e(f"v_mov_b32 v{t1}, v{vL}")
    nop(2)
    e(f"v_permlane32_swap_b32 v{vL}, v{t1}")
    nop(1)
    e(f"v_add_f32 v{vL}, v{vL}, v{t1}")
    vI2, vG2 = t2, t3
    e(f"v_and_b32 v{vI2}, 15, v{vLANE}")
    e(f"v_lshrrev_b32 v{vG2}, 4, v{vLANE}")
    c("O write addr = OL + w*1312 + (176*hs + 40*g + (n&7))*4 (+32*r)")
    e(f"v_lshrrev_b32 v{t0}, 3, v{vI2}")
    e(f"v_mul_u32_u24 v{t0}, 176, v{t0}")
    e(f"v_mad_u32_u24 v{t0}, v{vG2}, 40, v{t0}")
    e(f"v_and_b32 v{t1}, 7, v{vI2}")
    e(f"v_add_u32 v{t0}, v{t0}, v{t1}")
    e(f"v_lshlrev_b32 v{t0}, 2, v{t0}")
    e(f"s_mul_i32 s{sA}, s{sW}, 1312")
    e(f"v_add_u32 v{t0}, s{sA}, v{t0}")
    for r in range(4):
        e(f"ds_write_b32 v{t0}, v{vO+r} offset:{OL + 32*r}")
    c("ML write: lanes 0 and 8: addr = MLL + hs*64 + w*8")
    e(f"v_lshrrev_b32 v{t0}, 3, v{vI2}")
    e(f"v_lshlrev_b32 v{t0}, 6, v{t0}")
    e(f"s_lshl_b32 s{sA}, s{sW}, 3")
    e(f"v_add_u32 v{t0}, s{sA}, v{t0}")
    e(f"s_mov_b64 {sr(sEX,2)}, exec")
    e(f"s_mov_b64 exec, 0x101")
    e(f"ds_write_b64 v{t0}, {vr(vMX,2)} offset:{MLL}")
    e(f"s_mov_b64 exec, {sr(sEX,2)}")
    e("s_waitcnt vmcnt(0) lgkmcnt(0)")
    e("s_barrier")
    if skipo:
        c("microbench: store O")
        e(f"v_lshlrev_b32 v{t0}, 4, v0")
        e(f"s_lshl_b32 s{sA}, s2, 13")
        e(f"buffer_store_dwordx4 {vr(vO,4)}, v{t0}, {sr(sWS,4)}, s{sA} offen")
        e("s_endpgm")
    else:
        vML = 48
        vWT = 64
        vOR = 72
        vACC = 8
        ACC = [32, 36, 40, 44, 104]
        vOV = 108
        c("O read addr: d0 = 16w + 4g ; A = d0 + 8*(d0>>5)")
        e(f"s_lshl_b32 s{sA}, s{sW}, 4")
        e(f"v_lshlrev_b32 v{t0}, 2, v{vG2}")
        e(f"v_add_u32 v{t0}, s{sA}, v{t0}")
        e(f"v_lshrrev_b32 v{t1}, 5, v{t0}")
        e(f"v_lshl_add_u32 v{t0}, v{t1}, 3, v{t0}")
        e(f"v_lshlrev_b32 v{t0}, 2, v{t0}")
        e(f"v_mov_b32 v{t1}, 0")
        c("ML global store offset per lane: ML_OFF + (yrow/3*4 + yrow%3)*8 ; computed scalar for both cs")
        for (sy, dst) in ((sY0, sA), (sY1, sB_)):
            e(f"s_mul_i32 s{dst}, s{sy}, 171")
            e(f"s_lshr_b32 s{dst}, s{dst}, 9")
            e(f"s_add_u32 s{dst}, s{dst}, s{sy}")
            e(f"s_lshl_b32 s{dst}, s{dst}, 3")
            e(f"s_add_u32 s{dst}, s{dst}, {ML_OFF}")
        vMLO = vB1 + 3 + 0
        vMLO = vO
        vYO = vO + 1
        e(f"v_mov_b32 v{vMLO}, s{sA}")
        e(f"v_mov_b32 v{vO+2}, s{sB_}")
        e(f"s_mov_b32 s{sT2}, 0xff00ff00")
        e(f"s_mov_b32 s{sT2+1}, 0xff00ff00")
        e(f"v_cndmask_b32 v{vMLO}, v{vMLO}, v{vO+2}, {sr(sT2,2)}")
        e(f"s_mul_i32 s{sA}, s{sY0}, 2304")
        e(f"s_mul_i32 s{sB_}, s{sY1}, 2304")
        e(f"v_mov_b32 v{vYO}, s{sA}")
        e(f"v_mov_b32 v{vO+2}, s{sB_}")
        e(f"v_cndmask_b32 v{vYO}, v{vYO}, v{vO+2}, {sr(sT2,2)}")
        def opass(hp):
            for k in range(4):
                e(f"ds_read_b128 {vr(vML+4*k,4)}, v{t1} offset:{MLL + hp*64 + 16*k}")
            for w in range(8):
                e(f"ds_read_b128 {vr(vOR+4*w,4)}, v{t0} offset:{OL + w*1312 + hp*704}")
            e("s_waitcnt lgkmcnt(8)")
            e(f"v_mov_b32 v{vS}, s{sNEG}")
            for w in range(8):
                msk = sMLO if w < 4 else sMHI
                e(f"v_cndmask_b32 v{vML+2*w}, v{vS}, v{vML+2*w}, {sr(msk,2)}")
            e(f"v_max3_f32 v{vS}, v{vML}, v{vML+2}, v{vML+4}")
            e(f"v_max3_f32 v{vS}, v{vS}, v{vML+6}, v{vML+8}")
            e(f"v_max3_f32 v{vS}, v{vS}, v{vML+10}, v{vML+12}")
            e(f"v_max_f32 v{vS}, v{vS}, v{vML+14}")
            e(f"v_mul_f32 v{vS}, s{sC}, v{vS}")
            for w in range(8):
                e(f"v_fma_f32 v{vWT+w}, v{vML+2*w}, s{sC}, -v{vS}")
            for w in range(8):
                e(f"v_exp_f32 v{vWT+w}, v{vWT+w}")
            nop(1)
            e(f"v_mul_f32 v{vS+1}, v{vWT}, v{vML+1}")
            for w in range(1, 8):
                e(f"v_fma_f32 v{vS+1}, v{vWT+w}, v{vML+2*w+1}, v{vS+1}")
            e(f"v_rcp_f32 v{vS+2}, v{vS+1}")
            c("publish (Mc, L) from wave 0")
            e(f"s_cmp_lg_u32 s{sW}, 0")
            e(f"s_cbranch_scc1 L_mlskip{hp}")
            e(f"s_mov_b64 exec, {sr(sMLM[hp],2)}")
            e(f"buffer_store_dwordx2 {vr(vS,2)}, v{vMLO}, {sr(sWS,4)}, 0 offen")
            e(f"s_mov_b64 exec, {sr(sEX,2)}")
            lab(f"L_mlskip{hp}")
            e("s_waitcnt lgkmcnt(0)")
            for u in range(4):
                e(f"v_mul_f32 v{vOV+u}, v{vWT}, v{vOR+u}")
            for w in range(1, 8):
                for u in range(4):
                    e(f"v_fma_f32 v{vOV+u}, v{vWT+w}, v{vOR+4*w+u}, v{vOV+u}")
            for u in range(4):
                e(f"v_mul_f32 v{vOV+u}, v{vS+2}, v{vOV+u}")
            for u in range(4):
                e(f"v_cvt_pk_bf16_f32 v{vOV+u}, v{vOV+u}, v{vOV+u}")
            for u in range(4):
                e(f"v_cndmask_b32 v{vOV+u}, 0, v{vOV+u}, {sr(sPM[hp],2)}")
            for u in range(4):
                B = vB0 if u % 2 == 0 else vB1
                for k in range(4):
                    e(f"v_and_b32 v{B+k}, v{vOV+u}, v{vM+k}")
                nop(2)
                first = (hp == 0 and u == 0)
                for cg in range(4):
                    src = "0" if first else vr(ACC[cg], 4)
                    e(f"v_mfma_f32_16x16x32_bf16 {vr(ACC[cg],4)}, {vr(vW[hp]+18*u+4*cg,4)}, {vr(B,4)}, {src}")
                src = "0" if first else vr(ACC[4], 4)
                e(f"v_mfma_f32_16x16x16_bf16 {vr(ACC[4],4)}, {vr(vW[hp]+18*u+16,2)}, {vr(B,2)}, {src}")
        opass(0)
        e(f"s_cmp_eq_u32 s{sISB}, 1")
        e("s_cbranch_scc1 L_op1done")
        opass(1)
        lab("L_op1done")
        c("write y image: YI + w*5120 + cgi*1024 + lane*16")
        e(f"s_mul_i32 s{sA}, s{sW}, 5120")
        e(f"v_lshlrev_b32 v{t0}, 4, v{vLANE}")
        e(f"v_add_u32 v{t1}, s{sA}, v{t0}")
        nop(10)
        for cg in range(5):
            e(f"ds_write_b128 v{t1}, {vr(ACC[cg],4)} offset:{YI + cg*1024}")
        e("s_waitcnt lgkmcnt(0)")
        e("s_barrier")
        e(f"s_cmp_ge_u32 s{sW}, 5")
        e("s_cbranch_scc1 L_end")
        c("wave w sums block cgi=w")
        e(f"s_lshl_b32 s{sA}, s{sW}, 10")
        e(f"v_add_u32 v{t1}, s{sA}, v{t0}")
        for w in range(8):
            e(f"ds_read_b128 {vr(vOR+4*w,4)}, v{t1} offset:{YI + w*5120}")
        c("global offset: cgi<4: yrow*2304 + (cgi*32 + g*8 + (n&7))*16 ; cgi=4: yrow*2304 + (128 + g*4 + (n&7))*16, n&7<4")
        e(f"v_and_b32 v{t0}, 7, v{vI2}")
        e(f"s_mov_b32 s{sT2}, 0x0f0f0f0f")
        e(f"s_mov_b32 s{sT2+1}, 0x0f0f0f0f")
        e(f"s_cmp_eq_u32 s{sW}, 4")
        e(f"s_cselect_b32 s{sA}, 2, 3")
        e(f"s_cselect_b64 {sr(sT2,2)}, {sr(sT2,2)}, -1")
        e(f"s_and_b64 {sr(sT2,2)}, {sr(sT2,2)}, {sr(sYM,2)}")
        e(f"v_lshlrev_b32 v{t1}, s{sA}, v{vG2}")
        e(f"v_add_u32 v{t0}, v{t0}, v{t1}")
        e(f"s_lshl_b32 s{sA}, s{sW}, 5")
        e(f"v_add_u32 v{t0}, s{sA}, v{t0}")
        e(f"v_lshl_add_u32 v{t0}, v{t0}, 4, v{vYO}")
        for step, prs in ((4, ((0, 1), (2, 3), (4, 5), (6, 7))), (0, ((0, 2), (4, 6))), (0, ((0, 4),))):
            for n_, (a, b_) in enumerate(prs):
                if step == 4:
                    e(f"s_waitcnt lgkmcnt({6 - 2*n_})")
                for u in range(4):
                    e(f"v_add_f32 v{vOR+4*a+u}, v{vOR+4*a+u}, v{vOR+4*b_+u}")
        e(f"s_mov_b64 exec, {sr(sT2,2)}")
        e(f"buffer_store_dwordx4 {vr(vOR,4)}, v{t0}, {sr(sWS,4)}, 0 offen offset:{Y_OFF}")
    lab("L_end")
    e("s_endpgm")
    main = g.text()

    g = G()
    e, c, lab, nop = g.e, g.c, g.lab, g.nop
    lab("final_reduce_kernel")
    e("s_cmp_ge_u32 s2, 72")
    e("s_cbranch_scc1 L2_end")
    e("s_load_dwordx2 s[4:5], s[0:1], 96")
    e("s_load_dwordx2 s[8:9], s[0:1], 80")
    c("mb = wg/18, blk = wg%18")
    e("s_mul_i32 s12, s2, 57")
    e("s_lshr_b32 s12, s12, 10")
    e("s_mul_i32 s13, s12, 18")
    e("s_sub_u32 s13, s2, s13")
    c("head = tid>>3 ; qd = tid&7")
    e("v_lshrrev_b32 v1, 3, v0")
    e("v_and_b32 v2, 7, v0")
    e("s_lshl_b32 s14, s12, 5")
    e("v_add_u32 v1, s14, v1")
    e("v_lshlrev_b32 v3, 5, v1")
    e("v_mul_u32_u24 v4, 6912, v1")
    e("s_lshl_b32 s14, s13, 7")
    e("v_lshl_add_u32 v4, v2, 4, v4")
    e("v_add_u32 v4, s14, v4")
    e("s_mov_b32 s6, %d" % WS_BYTES)
    e("s_mov_b32 s7, 0x00020000")
    e("s_mov_b32 s10, 4608")
    e("s_mov_b32 s11, 0x00020000")
    e("s_mov_b32 s15, %d" % ML_OFF)
    e("s_mov_b32 s16, 2304")
    e("s_mov_b32 s17, 4608")
    e("s_waitcnt lgkmcnt(0)")
    e("buffer_load_dwordx4 v[8:11], v3, s[4:7], s15 offen")
    e("buffer_load_dwordx2 v[12:13], v3, s[4:7], s15 offen offset:16")
    e("buffer_load_dwordx4 v[16:19], v4, s[4:7], 0 offen")
    e("buffer_load_dwordx4 v[20:23], v4, s[4:7], s16 offen")
    e("buffer_load_dwordx4 v[24:27], v4, s[4:7], s17 offen")
    e("s_waitcnt vmcnt(3)")
    e("v_max3_f32 v5, v8, v10, v12")
    e("v_sub_f32 v8, v8, v5")
    e("v_sub_f32 v10, v10, v5")
    e("v_sub_f32 v12, v12, v5")
    e("v_exp_f32 v8, v8")
    e("v_exp_f32 v10, v10")
    e("v_exp_f32 v12, v12")
    nop(1)
    e("v_mul_f32 v8, v8, v9")
    e("v_mul_f32 v10, v10, v11")
    e("v_mul_f32 v12, v12, v13")
    e("v_add_f32 v5, v8, v10")
    e("v_add_f32 v5, v5, v12")
    e("v_rcp_f32 v5, v5")
    nop(1)
    e("v_mul_f32 v8, v8, v5")
    e("v_mul_f32 v10, v10, v5")
    e("v_mul_f32 v12, v12, v5")
    e("s_waitcnt vmcnt(0)")
    for r in range(4):
        e(f"v_mul_f32 v{16+r}, v8, v{16+r}")
    for r in range(4):
        e(f"v_fma_f32 v{16+r}, v10, v{20+r}, v{16+r}")
    for r in range(4):
        e(f"v_fma_f32 v{16+r}, v12, v{24+r}, v{16+r}")
    nop(2)
    for r in range(4):
        e(f"v_add_f32_dpp v{16+r}, v{16+r}, v{16+r} row_ror:8 row_mask:0xf bank_mask:0xf")
    for sw in ("v_permlane16_swap_b32", "v_permlane32_swap_b32"):
        for r in range(4):
            e(f"v_mov_b32 v{20+r}, v{16+r}")
        nop(2)
        for r in range(4):
            e(f"{sw} v{16+r}, v{20+r}")
        nop(1)
        for r in range(4):
            e(f"v_add_f32 v{16+r}, v{16+r}, v{20+r}")
    c("lds: [wave][qd] b128 from lanes 0..7")
    e("v_lshrrev_b32 v5, 6, v0")
    e("v_lshlrev_b32 v5, 7, v5")
    e("v_lshl_add_u32 v5, v2, 4, v5")
    e("s_mov_b64 s[20:21], exec")
    e("s_mov_b64 exec, 0xff")
    e("ds_write_b128 v5, v[16:19]")
    e("s_mov_b64 exec, s[20:21]")
    e("s_waitcnt lgkmcnt(0)")
    e("s_barrier")
    e("v_cmp_gt_u32 vcc, 32, v0")
    e("s_and_saveexec_b64 s[20:21], vcc")
    e("s_cbranch_execz L2_end")
    c("thread t<32: qd = t>>2, r = t&3 -> lds float index t (+32 per wave)")
    e("v_lshlrev_b32 v5, 2, v0")
    e("ds_read_b32 v8, v5")
    e("ds_read_b32 v9, v5 offset:128")
    e("ds_read_b32 v10, v5 offset:256")
    e("ds_read_b32 v11, v5 offset:384")
    e("v_lshrrev_b32 v6, 2, v0")
    e("v_and_b32 v7, 3, v0")
    c("blk<16: col = 32blk + 8r + qd ; else col = 32blk + 16*(qd>>2) + 4r + (qd&3)")
    e("v_lshl_add_u32 v12, v7, 3, v6")
    e("v_lshrrev_b32 v13, 2, v6")
    e("v_lshlrev_b32 v13, 4, v13")
    e("v_lshl_add_u32 v13, v7, 2, v13")
    e("v_and_b32 v14, 3, v6")
    e("v_add_u32 v13, v13, v14")
    e("s_cmp_lt_u32 s13, 16")
    e("s_cselect_b64 s[22:23], -1, 0")
    e("v_cndmask_b32 v12, v13, v12, s[22:23]")
    c("out elem = b*1152 + model*576 + 32*blk + col ; mb = model*2+b")
    e("s_and_b32 s14, s12, 1")
    e("s_mul_i32 s14, s14, 1152")
    e("s_lshr_b32 s15, s12, 1")
    e("s_mul_i32 s15, s15, 576")
    e("s_add_u32 s14, s14, s15")
    e("s_lshl_b32 s15, s13, 5")
    e("s_add_u32 s14, s14, s15")
    e("v_add_u32 v12, s14, v12")
    e("v_lshlrev_b32 v12, 1, v12")
    e("s_waitcnt lgkmcnt(0)")
    e("v_add_f32 v8, v8, v9")
    e("v_add_f32 v10, v10, v11")
    e("v_add_f32 v8, v8, v10")
    e("v_cvt_pk_bf16_f32 v8, v8, v8")
    e("buffer_store_short v8, v12, s[8:11], 0 offen")
    lab("L2_end")
    e("s_endpgm")
    k2 = g.text()

    hdr = open("concat_heads__gqa_block_cached__mha_block_cached__decode.s.ref").read().split("; Override launch")[0]
    out = hdr
    if skipo:
        out += f"; @launch grid=(256,1,1) block=(512,1,1) lds={LDS}\n"
    else:
        out += f"; @launch kernel={KN} grid=(256,1,1) block=(512,1,1) lds={LDS}\n"
        out += f"; @launch kernel=final_reduce_kernel grid=(72,1,1) block=(256,1,1) lds=512\n"
    out += '.amdgcn_target "amdgcn-amd-amdhsa--gfx950"\n.text\n'
    out += f".globl {KN}\n.p2align 8\n.type {KN},@function\n" + main
    if not skipo:
        out += ".globl final_reduce_kernel\n.p2align 8\n.type final_reduce_kernel,@function\n" + k2
    out += '.section .rodata,"a"\n.p2align 6\n'
    def kd(name, v, s):
        return (f".amdhsa_kernel {name}\n  .amdhsa_next_free_vgpr {v}\n  .amdhsa_next_free_sgpr {s}\n"
                f"  .amdhsa_accum_offset {((v+3)//4)*4}\n  .amdhsa_group_segment_fixed_size 0\n  .amdhsa_kernarg_size 104\n"
                f"  .amdhsa_user_sgpr_count 2\n  .amdhsa_user_sgpr_kernarg_segment_ptr 1\n  .amdhsa_system_sgpr_workgroup_id_x 1\n"
                f"  .amdhsa_float_denorm_mode_32 3\n"
                f".end_amdhsa_kernel\n")
    out += kd(KN, 256, 96)
    if not skipo:
        out += ".p2align 6\n" + kd("final_reduce_kernel", 32, 32)
    return out

if __name__ == "__main__":
    ap = argparse.ArgumentParser()
    ap.add_argument("-o", default="k.s")
    ap.add_argument("--kpat", default="mfma")
    ap.add_argument("--ld", default="nt")
    ap.add_argument("--wld", default="")
    ap.add_argument("--skipq", action="store_true")
    ap.add_argument("--skipo", action="store_true")
    a = ap.parse_args()
    open(a.o, "w").write(gen(a.kpat, a.ld, a.wld, a.skipq, a.skipo))
```

```python
import sys, struct, argparse, math
from gen import G, vr, sr, f2u, KN, CSCALE, NEG

EPOCH_OFF = 0
QP_OFF = 0x1000
CT_OFF = 0x50000
OS_OFF = 0x100000
OSLOT = 640
Y_OFF = 0x200000
YIMG = 4608
TS_OFF = 0x1000000
WS_BYTES = 0x2000000

def gen(P=4, ld="nt", wld="nt", ts=False, pubf="sc1", polf="sc1", maxpoll=20000, sleep=1, pace=1, halfpace=True,
        wowhen="flag", S=60, dbl=False):
    g = G()
    e, c, lab, nop = g.e, g.c, g.lab, g.nop
    ldf = (" " + ld) if ld else ""
    wldf = (" " + wld) if wld else ""
    pubf = (" " + pubf) if pubf else ""
    polf = (" " + polf) if polf else ""
    DS = 2
    vLANE, vI, vG = 1, 2, 3
    vM = 4
    vO = 8
    vMX, vL = 12, 13
    vS = 14
    vB0, vB1 = 18, 22
    vT = 26
    vQ = 32
    vOFFK, vOFFV = 48, 49
    vX = 50
    vFF = 63
    vBIG = 64
    sW = 3
    sK, sV, sWX, sXS, sOUT, sWS = 4, 8, 12, 16, 20, 24
    sCUR, sCNT, sTMP, sTAG = 28, 29, 30, 31
    sC, sNEG, sSELLO, sSELHI = 32, 33, 34, 35
    sP = 36
    sA, sB, sD, sE, sF = 62, 63, 64, 65, 66
    sSLOT, sSTR, sCTR = 67, 68, 69
    sTB = 70
    sM1 = 74
    sTS = 76
    sTAGC, sBASE = 78, 79
    sQO = 80
    sPOLL, sKVSZ = 92, 93
    sM2 = 60
    QF, OST, FLG = 0, 1024, 1536
    LDS = 2048
    NB = (512 - 8 * S) // 2
    assert (S - P) % 2 == 0 and S - 4 >= P

    def stamp(k):
        if not ts:
            return
        e(f"s_memrealtime {sr(sTS,2)}")
        e("s_waitcnt lgkmcnt(0)")
        e(f"s_mov_b32 s{94+k}, s{sTS}")

    lab(KN)
    e("s_cmp_ge_u32 s2, 256")
    e("s_cbranch_scc1 L_end")
    if ts:
        for k in range(8):
            e(f"s_mov_b32 s{94+k}, 0")
    stamp(0)
    e(f"s_load_dwordx2 {sr(sP+24,2)}, s[0:1], 96")
    e(f"s_load_dwordx16 {sr(sP,16)}, s[0:1], 0")
    e(f"s_load_dwordx8 {sr(sP+16,8)}, s[0:1], 64")
    e(f"v_and_b32 v{vLANE}, 63, v0")
    e(f"v_lshrrev_b32 v{vT}, 6, v0")
    e(f"v_and_b32 v{vI}, 15, v0")
    e(f"v_readfirstlane_b32 s{sW}, v{vT}")
    e(f"v_lshrrev_b32 v{vG}, 4, v{vLANE}")
    e(f"v_mov_b32 v{vFF}, 0xff")
    e(f"s_mov_b32 s{sC}, 0x{f2u(CSCALE):08x}")
    e(f"s_mov_b32 s{sNEG}, 0x{NEG:08x}")
    e(f"s_mov_b32 s{sSELLO}, 0x01000100")
    e(f"s_mov_b32 s{sSELHI}, 0x03020302")
    e(f"s_mov_b32 s{sWS+2}, {WS_BYTES}")
    for s in (sK, sV, sWX, sXS, sOUT, sWS):
        e(f"s_mov_b32 s{s+3}, 0x00020000")
    e("s_waitcnt lgkmcnt(0)")
    e(f"s_load_dword s{sTAG}, {sr(sP+24,2)}, {EPOCH_OFF}")
    e(f"s_mov_b32 s{sWS}, s{sP+24}")
    e(f"s_mov_b32 s{sWS+1}, s{sP+25}")
    e(f"s_cmp_eq_u32 s{sW}, 3")
    e("s_cbranch_scc1 L_helper")

    def masks():
        e(f"v_and_b32 v{vT+4}, 1, v{vI}")
        e(f"v_lshlrev_b32 v{vT+4}, 4, v{vT+4}")
        e(f"v_mov_b32 v{vT+5}, 0xffff")
        e(f"v_lshlrev_b32 v{vT+5}, v{vT+4}, v{vT+5}")
        e(f"v_bfe_u32 v{vT+4}, v{vI}, 1, 2")
        for r in range(4):
            e(f"v_cmp_eq_u32 vcc, {r}, v{vT+4}")
            nop(2)
            e(f"v_cndmask_b32 v{vM+r}, 0, v{vT+5}, vcc")

    def mktags():
        c("tag = epoch+1 ; tag bytes from a multiplicative hash")
        e(f"s_add_u32 s{sTAG}, s{sTAG}, 1")
        e(f"s_mul_i32 s{sTB}, s{sTAG}, 0x9e3779b1")
        e(f"s_lshr_b32 s{sTB+1}, s{sTB}, 8")
        e(f"s_lshr_b32 s{sTB+2}, s{sTB}, 16")
        e(f"s_lshr_b32 s{sTB+3}, s{sTB}, 24")
        e(f"s_and_b32 s{sTAGC}, s{sTAG}, 0x3fffff")

    def tagquad(dst, src):
        for k in range(4):
            e(f"v_bfi_b32 v{dst+k}, v{vFF}, s{sTB+k}, v{src+k}")

    def write_ts():
        if not ts:
            return
        stamp(7)
        for k in range(8):
            e(f"v_mov_b32 v{vQ+k}, s{94+k}")
        e(f"s_lshl_b32 s{sA}, s2, 2")
        e(f"s_add_u32 s{sA}, s{sA}, s{sW}")
        e(f"s_lshl_b32 s{sA}, s{sA}, 5")
        e(f"s_add_u32 s{sA}, s{sA}, {TS_OFF}")
        e(f"v_mov_b32 v{vT+4}, 0")
        e("s_mov_b64 exec, 1")
        e(f"buffer_store_dwordx4 {vr(vQ,4)}, v{vT+4}, {sr(sWS,4)}, s{sA} offen")
        e(f"buffer_store_dwordx4 {vr(vQ+4,4)}, v{vT+4}, {sr(sWS,4)}, s{sA} offen offset:16")

    c("================ stream wave: group k = wg>>3, r8 = wg&7")
    e(f"s_lshr_b32 s{sA}, s2, 3")
    e(f"s_and_b32 s{sB}, s2, 7")
    e(f"s_cmp_eq_u32 s{sW}, 0")
    e("s_cbranch_scc0 L_strB")
    c("model A: unit = k")
    e(f"s_mov_b32 s{sK}, s{sP+2}"); e(f"s_mov_b32 s{sK+1}, s{sP+3}")
    e(f"s_mov_b32 s{sV}, s{sP+4}"); e(f"s_mov_b32 s{sV+1}, s{sP+5}")
    e(f"s_mov_b32 s{sKVSZ}, 0x4000000")
    e(f"s_lshl_b32 s{sBASE}, s{sA}, 21")
    e(f"s_lshl_b32 s{sCTR}, s{sA}, 7")
    e(f"s_lshl_b32 s{sSLOT}, s{sA}, 4")
    e(f"s_add_u32 s{sSLOT}, s{sSLOT}, s{sB}")
    e(f"s_mov_b64 {sr(sM1,2)}, -1")
    e(f"s_mov_b32 s{sQO}, 0x101")
    e(f"s_mov_b32 s{sQO+1}, 0")
    e(f"v_lshrrev_b32 v{vX}, 3, v{vI}")
    e(f"v_lshlrev_b32 v{vX+1}, 8, v{vX}")
    e(f"v_mul_u32_u24 v{vX}, {8*OSLOT}, v{vX}")
    e("s_branch L_strC")
    lab("L_strB")
    c("model B: unit = 2k + (w-1)")
    e(f"s_mov_b32 s{sK}, s{sP+12}"); e(f"s_mov_b32 s{sK+1}, s{sP+13}")
    e(f"s_mov_b32 s{sV}, s{sP+14}"); e(f"s_mov_b32 s{sV+1}, s{sP+15}")
    e(f"s_mov_b32 s{sKVSZ}, 0x8000000")
    e(f"s_lshl_b32 s{sA}, s{sA}, 1")
    e(f"s_add_u32 s{sA}, s{sA}, s{sW}")
    e(f"s_sub_u32 s{sA}, s{sA}, 1")
    e(f"s_lshl_b32 s{sBASE}, s{sA}, 21")
    e(f"s_add_u32 s{sCTR}, s{sA}, 32")
    e(f"s_lshl_b32 s{sCTR}, s{sCTR}, 7")
    e(f"s_add_u32 s{sSLOT}, s{sA}, 64")
    e(f"s_lshl_b32 s{sSLOT}, s{sSLOT}, 3")
    e(f"s_add_u32 s{sSLOT}, s{sSLOT}, s{sB}")
    e(f"s_mov_b32 s{sM1}, 0x00ff00ff")
    e(f"s_mov_b32 s{sM1+1}, 0x00ff00ff")
    e(f"s_mov_b64 {sr(sQO,2)}, 1")
    e(f"v_mov_b32 v{vX}, 0")
    e(f"s_add_u32 s{sD}, s{sW}, 1")
    e(f"s_lshl_b32 s{sD}, s{sD}, 8")
    e(f"v_mov_b32 v{vX+1}, s{sD}")
    lab("L_strC")
    e(f"s_add_u32 s{sCTR}, s{sCTR}, {CT_OFF}")
    e(f"s_lshl_b32 s{sCUR}, s{sB}, 12")
    e(f"s_mov_b32 s{sSTR}, 32768")
    e(f"s_add_u32 s{sCUR}, s{sCUR}, s{sBASE}")
    e(f"v_mov_b32 v{vX+2}, 0")
    e(f"s_mov_b32 s{sK+2}, s{sKVSZ}")
    e(f"s_mov_b32 s{sV+2}, s{sKVSZ}")
    e(f"v_lshlrev_b32 v{vOFFV}, 10, v{vG}")
    e(f"v_lshl_add_u32 v{vOFFV}, v{vI}, 4, v{vOFFV}")
    e(f"v_lshlrev_b32 v{vOFFK}, 8, v{vI}")
    e(f"v_lshl_add_u32 v{vOFFK}, v{vG}, 4, v{vOFFK}")
    e("s_barrier")
    BUF = [vBIG + 32 * b for b in range(P)]
    assert vBIG + 32 * P <= 256
    Q = []
    def loadK(b, name):
        for s in range(4):
            e(f"buffer_load_dwordx4 {vr(BUF[b]+4*s,4)}, v{vOFFK}, {sr(sK,4)}, s{sCUR} offen offset:{s*64}{ldf}")
        Q.append((name, 4))
    def loadV(b, name):
        for r in range(4):
            e(f"buffer_load_dwordx4 {vr(BUF[b]+16+4*r,4)}, v{vOFFV}, {sr(sV,4)}, s{sCUR} offen offset:{r*256}{ldf}")
        Q.append((name, 4))
        e(f"s_add_u32 s{sCUR}, s{sCUR}, s{sSTR}")
    def atomic(name):
        e("s_mov_b64 exec, 1")
        e(f"v_mov_b32 v{vX+3}, 1")
        e(f"buffer_atomic_add v{vX+3}, v{vX+2}, {sr(sWS,4)}, s{sCTR} offen sc0")
        e("s_mov_b64 exec, -1")
        Q.append((name, 1))
    def waitfor(name):
        idx = [a for a, _ in Q].index(name)
        n = sum(k for _, k in Q[idx+1:])
        assert n <= 63
        e(f"s_waitcnt vmcnt({n})")
        del Q[:idx + 1]
    def shiftQ(d):
        Q[:] = [(((a[0], a[1] + d) if isinstance(a[1], int) else a), k) for a, k in Q]
    for t in range(min(P, pace)):
        loadK(t, ("K", t)); loadV(t, ("V", t))
    masks()
    for r in range(4):
        e(f"v_mov_b32 v{vO+r}, 0")
    e(f"v_mov_b32 v{vMX}, s{sNEG}")
    e(f"v_mov_b32 v{vL}, 0")
    e(f"v_lshl_add_u32 v{vX+1}, v{vG}, 4, v{vX+1}")
    c("publish offsets: hs*8*OSLOT + (g*8+k)*16")
    e(f"v_and_b32 v{vX+4}, 7, v{vI}")
    e(f"v_lshl_add_u32 v{vX+4}, v{vG}, 3, v{vX+4}")
    e(f"v_lshl_add_u32 v{vX+4}, v{vX+4}, 4, v{vX}")
    e(f"s_mul_i32 s{sSLOT}, s{sSLOT}, {OSLOT}")
    e(f"s_add_u32 s{sSLOT}, s{sSLOT}, {OS_OFF}")
    for t in range(min(P, pace), P):
        if halfpace:
            e(f"s_waitcnt vmcnt({8*pace-4})")
            loadK(t, ("K", t))
            e(f"s_waitcnt vmcnt({8*pace-4})")
            loadV(t, ("V", t))
        else:
            e(f"s_waitcnt vmcnt({8*(pace-1)})")
            loadK(t, ("K", t)); loadV(t, ("V", t))
    e("s_barrier")
    for s in range(4):
        e(f"ds_read_b128 {vr(vQ+4*s,4)}, v{vX+1} offset:{QF + 64*s}")
    e("s_waitcnt lgkmcnt(0)")
    stamp(1)
    mktags()
    t0, t1, t2, t3 = vT, vT + 1, vT + 2, vT + 3
    def tile(b, t, nxt, pre=None, afterwait=None):
        K, V = BUF[b], BUF[b] + 16
        waitfor(("K", t))
        if afterwait is not None:
            afterwait()
        for s in range(4):
            src = "0" if s == 0 else vr(vS, 4)
            e(f"v_mfma_f32_16x16x32_bf16 {vr(vS,4)}, {vr(K+4*s,4)}, {vr(vQ+4*s,4)}, {src}")
        if pre is not None:
            pre()
        if nxt is not None:
            loadK(nxt[0], ("K", nxt[1]))
            nop(4)
        else:
            nop(8)
        e(f"v_max3_f32 v{t0}, v{vS}, v{vS+1}, v{vS+2}")
        e(f"v_max3_f32 v{t0}, v{t0}, v{vS+3}, v{vMX}")
        e(f"v_mov_b32 v{t1}, v{t0}")
        nop(2)
        e(f"v_permlane16_swap_b32 v{t0}, v{t1}")
        nop(1)
        e(f"v_max_f32 v{t0}, v{t0}, v{t1}")
        e(f"v_mov_b32 v{t1}, v{t0}")
        nop(2)
        e(f"v_permlane32_swap_b32 v{t0}, v{t1}")
        nop(1)
        e(f"v_max_f32 v{t0}, v{t0}, v{t1}")
        e(f"v_sub_f32 v{t1}, v{vMX}, v{t0}")
        e(f"v_mul_f32 v{t1}, s{sC}, v{t1}")
        e(f"v_exp_f32 v{t1}, v{t1}")
        e(f"v_mov_b32 v{vMX}, v{t0}")
        e(f"v_mul_f32 v{t0}, s{sC}, v{t0}")
        for r in range(4):
            e(f"v_fma_f32 v{vS+r}, v{vS+r}, s{sC}, -v{t0}")
        for r in range(4):
            e(f"v_exp_f32 v{vS+r}, v{vS+r}")
        for r in range(4):
            e(f"v_mul_f32 v{vO+r}, v{t1}, v{vO+r}")
        e(f"v_add_f32 v{t2}, v{vS}, v{vS+1}")
        e(f"v_add_f32 v{t3}, v{vS+2}, v{vS+3}")
        e(f"v_fma_f32 v{vL}, v{vL}, v{t1}, v{t2}")
        e(f"v_add_f32 v{vL}, v{vL}, v{t3}")
        for r in range(4):
            e(f"v_cvt_pk_bf16_f32 v{vS+r}, v{vS+r}, v{vS+r}")
        waitfor(("V", t))
        for r in range(4):
            B = vB0 if r % 2 == 0 else vB1
            for k in range(4):
                e(f"v_and_b32 v{B+k}, v{vS+r}, v{vM+k}")
            nop(2)
            e(f"v_mfma_f32_16x16x32_bf16 {vr(vO,4)}, {vr(V+4*r,4)}, {vr(B,4)}, {vr(vO,4)}")
        if nxt is not None:
            loadV(nxt[0], ("V", nxt[1]))
    def bufof(u):
        return u if u < P else (u - P) % DS
    for t in range(P):
        u = t + DS
        nxt = (bufof(u), u) if u >= P else None
        if nxt is not None:
            assert nxt[0] <= t
        tile(t, t, nxt)
    nloop = (S - 4 - P) // 2
    stamp(2)
    if nloop > 0:
        e(f"s_mov_b32 s{sCNT}, {nloop}")
        lab("L_loop")
        Qsave = list(Q)
        for k in range(DS):
            t = P + k
            tile(bufof(t), t, (bufof(t + DS), t + DS))
        shiftQ(-DS)
        assert Q == Qsave, (Q, Qsave)
        e(f"s_sub_u32 s{sCNT}, s{sCNT}, 1")
        e(f"s_cmp_lg_u32 s{sCNT}, 0")
        e("s_cbranch_scc1 L_loop")
        shiftQ(S - 4 - P)
    tile(bufof(S - 4), S - 4, (bufof(S - 2), S - 2), pre=lambda: atomic(("A", "a")))
    tile(bufof(S - 3), S - 3, (bufof(S - 1), S - 1))
    e(f"s_mov_b32 s{sSTR}, 4096")
    e(f"s_add_u32 s{sBASE}, s{sBASE}, {8*S*4096}")
    bx, by = bufof(S - 2), bufof(S - 1)
    X, Y = S - 2, S - 1
    lab("L_dyn")
    Qsave = list(Q)
    def ticket():
        e(f"v_readfirstlane_b32 s{sA}, v{vX+3}")
        nop(1)
        lab("L_tk")
        e(f"s_lshr_b32 s{sB}, s{sA}, 10")
        e(f"s_cmp_lg_u32 s{sB}, s{sTAGC}")
        e("s_cbranch_scc1 L_tkslow")
        e(f"s_and_b32 s{sA}, s{sA}, 1023")
        e(f"s_cmp_ge_u32 s{sA}, {NB}")
        e("s_cbranch_scc1 L_drain")
        e(f"s_lshl_b32 s{sCUR}, s{sA}, 13")
        e(f"s_add_u32 s{sCUR}, s{sCUR}, s{sBASE}")
    tile(bx, X, (bx, X + 2), pre=lambda: atomic(("A", "a")), afterwait=ticket)
    tile(by, Y, (by, Y + 2))
    shiftQ(-2)
    assert Q == Qsave, (Q, Qsave)
    e("s_branch L_dyn")
    c("slow path: counter not initialised yet -> blocking retry (bounded)")
    lab("L_tkslow")
    e(f"s_mov_b32 s{sPOLL}, {maxpoll}")
    lab("L_tkslow2")
    e("s_sleep 2")
    e("s_mov_b64 exec, 1")
    e(f"v_mov_b32 v{vX+3}, 1")
    e(f"buffer_atomic_add v{vX+3}, v{vX+2}, {sr(sWS,4)}, s{sCTR} offen sc0")
    e("s_mov_b64 exec, -1")
    e("s_waitcnt vmcnt(0)")
    e(f"v_readfirstlane_b32 s{sA}, v{vX+3}")
    e(f"s_sub_u32 s{sPOLL}, s{sPOLL}, 1")
    e(f"s_cmp_eq_u32 s{sPOLL}, 0")
    e("s_cbranch_scc1 L_drain")
    e(f"s_lshr_b32 s{sB}, s{sA}, 10")
    e(f"s_cmp_lg_u32 s{sB}, s{sTAGC}")
    e("s_cbranch_scc1 L_tkslow2")
    e("s_branch L_tk")
    lab("L_drain")
    if wowhen == "flag":
        e(f"v_mov_b32 v{t1}, 1")
        e(f"ds_write_b32 v{vX+2}, v{t1} offset:{FLG}")
    Q[:] = list(Qsave)
    tile(bx, X, None)
    tile(by, Y, None)
    assert not Q
    stamp(3)
    c("---- publish partial: O quad + {mc, l, mc, l}")
    e(f"v_mov_b32 v{t1}, v{vL}")
    e(f"v_mul_f32 v{vS}, s{sC}, v{vMX}")
    nop(1)
    e(f"v_permlane16_swap_b32 v{vL}, v{t1}")
    nop(1)
    e(f"v_add_f32 v{vL}, v{vL}, v{t1}")
    e(f"v_mov_b32 v{t1}, v{vL}")
    e(f"v_mov_b32 v{vS+2}, v{vS}")
    nop(1)
    e(f"v_permlane32_swap_b32 v{vL}, v{t1}")
    nop(1)
    tagquad(vO, vO)
    e(f"v_add_f32 v{vS+1}, v{vL}, v{t1}")
    e(f"s_mov_b64 exec, {sr(sM1,2)}")
    e(f"buffer_store_dwordx4 {vr(vO,4)}, v{vX+4}, {sr(sWS,4)}, s{sSLOT} offen{pubf}")
    e(f"s_mov_b64 exec, -1")
    e(f"v_mov_b32 v{vS+3}, v{vS+1}")
    tagquad(vS, vS)
    e(f"s_mov_b64 exec, {sr(sQO,2)}")
    e(f"buffer_store_dwordx4 {vr(vS,4)}, v{vX}, {sr(sWS,4)}, s{sSLOT} offen offset:512{pubf}")
    e(f"s_mov_b64 exec, -1")
    write_ts()
    e("s_endpgm")

    lab("L_helper")
    c("================ helper wave: model = wg>>7, head = (wg&127)>>2, qt = wg&3")
    e(f"s_lshr_b32 s{sA}, s2, 7")
    e(f"s_cmp_eq_u32 s{sA}, 0")
    e(f"s_cselect_b32 s{sXS}, s{sP+0}, s{sP+10}")
    e(f"s_cselect_b32 s{sXS+1}, s{sP+1}, s{sP+11}")
    e(f"s_cselect_b32 s{sWX}, s{sP+6}, s{sP+16}")
    e(f"s_cselect_b32 s{sWX+1}, s{sP+7}, s{sP+17}")
    e(f"s_cselect_b32 s{sK}, s{sP+8}, s{sP+18}")
    e(f"s_cselect_b32 s{sK+1}, s{sP+9}, s{sP+19}")
    e(f"s_mov_b32 s{sXS+2}, 2304")
    e(f"s_mov_b32 s{sWX+2}, {576*4096*2}")
    e(f"s_mov_b32 s{sK+2}, {576*4096*2}")
    e(f"s_mov_b32 s{sOUT}, s{sP+20}")
    e(f"s_mov_b32 s{sOUT+1}, s{sP+21}")
    e(f"s_mov_b32 s{sOUT+2}, 4608")
    e(f"s_bfe_u32 s{sB}, s2, 0x50002")
    e(f"s_and_b32 s{sD}, s2, 3")
    e(f"s_mul_i32 s{sE}, s{sD}, 144")
    e(f"v_mul_u32_u24 v{vT}, 36, v{vG}")
    e(f"v_add_u32 v{vT}, s{sE}, v{vT}")
    e(f"v_lshrrev_b32 v{vT+1}, 3, v{vI}")
    e(f"v_mul_u32_u24 v{vT+1}, 1152, v{vT+1}")
    e(f"v_lshl_add_u32 v{vT+1}, v{vT}, 1, v{vT+1}")
    e(f"v_lshlrev_b32 v{vT}, 13, v{vT}")
    e(f"v_lshl_add_u32 v{vT}, v{vI}, 4, v{vT}")
    e(f"s_lshl_b32 s{sTMP}, s{sB}, 8")
    XR = 208
    for k in range(4):
        e(f"buffer_load_dwordx4 {vr(XR+4*k,4)}, v{vT+1}, {sr(sXS,4)}, 0 offen offset:{16*k}")
    e(f"buffer_load_dwordx2 {vr(XR+16,2)}, v{vT+1}, {sr(sXS,4)}, 0 offen offset:64")
    for j in range(36):
        e(f"buffer_load_dwordx4 {vr(vBIG+4*j,4)}, v{vT}, {sr(sWX,4)}, s{sTMP} offen{wldf}")
        if j < 35:
            e(f"s_add_u32 s{sTMP}, s{sTMP}, 8192")
    e("s_barrier")
    masks()
    c("q gather soffsets: k = wg>>3, b = k>>4, kappa = k&15: base = QP + 8*kappa*1024 + b*128 ; A: +(4v+2qp)*1024 ; B: +128*1024")
    e(f"s_lshr_b32 s{sE}, s2, 3")
    e(f"s_and_b32 s{sF}, s{sE}, 15")
    e(f"s_lshr_b32 s{sE}, s{sE}, 4")
    e(f"s_lshl_b32 s{sF}, s{sF}, 13")
    e(f"s_lshl_b32 s{sE}, s{sE}, 7")
    e(f"s_add_u32 s{sF}, s{sF}, s{sE}")
    e(f"s_add_u32 s{sQO}, s{sF}, {QP_OFF}")
    e(f"s_add_u32 s{sQO+1}, s{sQO}, 4096")
    e(f"s_add_u32 s{sQO+2}, s{sQO}, {128*1024}")
    e(f"s_add_u32 s{sQO+3}, s{sQO}, {128*1024 + 4096}")
    c("gather lane offset: qh*1024 + g*256 + k*16 ; qh = lane>>5, g = (lane>>3)&3, k = lane&7")
    e(f"v_lshrrev_b32 v{vX}, 5, v{vLANE}")
    e(f"v_lshlrev_b32 v{vX}, 10, v{vX}")
    e(f"v_bfe_u32 v{vT+2}, v{vLANE}, 3, 2")
    e(f"v_lshl_add_u32 v{vX}, v{vT+2}, 8, v{vX}")
    e(f"v_and_b32 v{vT+3}, 7, v{vLANE}")
    e(f"v_lshl_add_u32 v{vX}, v{vT+3}, 4, v{vX}")
    c("lds q write addr: (32g + k)*2 (+16 r)")
    e(f"v_lshl_add_u32 v{vX+1}, v{vT+2}, 5, v{vT+3}")
    e(f"v_lshlrev_b32 v{vX+1}, 1, v{vX+1}")
    e(f"v_lshlrev_b32 v{vX+2}, 4, v{vLANE}")
    e("s_waitcnt vmcnt(30) lgkmcnt(0)")
    mktags()
    ACCQ = [vS, vO]
    for j in range(36):
        if j % 6 == 0 and j > 0:
            e(f"s_waitcnt vmcnt({30 - j})")
        B = vB0 if j % 2 == 0 else vB1
        sel = sSELLO if j % 2 == 0 else sSELHI
        tmp = vT + 4 + (j % 2)
        e(f"v_perm_b32 v{tmp}, v{XR+j//2}, v{XR+j//2}, s{sel}")
        for r in range(4):
            e(f"v_and_b32 v{B+r}, v{tmp}, v{vM+r}")
        nop(2)
        acc = ACCQ[j % 2]
        src = "0" if j < 2 else vr(acc, 4)
        e(f"v_mfma_f32_16x16x32_bf16 {vr(acc,4)}, {vr(vBIG+4*j,4)}, {vr(B,4)}, {src}")
    stamp(1)
    e(f"s_lshl_b32 s{sA}, s2, 10")
    e(f"s_add_u32 s{sA}, s{sA}, {QP_OFF}")
    nop(8)
    for r in range(4):
        e(f"v_add_f32 v{vS+r}, v{vS+r}, v{vO+r}")
    tagquad(vS, vS)
    e(f"buffer_store_dwordx4 {vr(vS,4)}, v{vX+2}, {sr(sWS,4)}, s{sA} offen{pubf}")

    def check(regs):
        first = True
        for q in regs:
            for k in (0, 2):
                e(f"v_xor_b32 v{vT}, s{sTB+k}, v{q+k}")
                e(f"v_xor_b32 v{vT+1}, s{sTB+k+1}, v{q+k+1}")
                if first:
                    e(f"v_or_b32 v{vT+2}, v{vT}, v{vT+1}")
                    first = False
                else:
                    e(f"v_or3_b32 v{vT+2}, v{vT}, v{vT+1}, v{vT+2}")
        e(f"v_and_b32 v{vT+2}, v{vFF}, v{vT+2}")
        e(f"v_cmp_ne_u32 vcc, 0, v{vT+2}")
        nop(2)
        e(f"s_cmp_eq_u64 vcc, 0")

    def poll(name, loads, regs):
        e(f"s_mov_b32 s{sPOLL}, {maxpoll}")
        lab(f"L_poll_{name}")
        loads()
        e("s_waitcnt vmcnt(0)")
        check(regs)
        e(f"s_cbranch_scc1 L_polld_{name}")
        if sleep:
            e(f"s_sleep {sleep}")
        e(f"s_sub_u32 s{sPOLL}, s{sPOLL}, 1")
        e(f"s_cmp_lg_u32 s{sPOLL}, 0")
        e(f"s_cbranch_scc1 L_poll_{name}")
        lab(f"L_polld_{name}")

    c("init ticket counters: WGs with r8==0, lanes 0..2 -> units k, 32+2k, 33+2k")
    e(f"s_and_b32 s{sE}, s2, 7")
    e(f"s_cmp_lg_u32 s{sE}, 0")
    e("s_cbranch_scc1 L_noinit")
    e(f"s_lshr_b32 s{sE}, s2, 3")
    e(f"v_mov_b32 v{vT}, s{sE}")
    e(f"s_lshl_b32 s{sE}, s{sE}, 1")
    e(f"s_add_u32 s{sE}, s{sE}, 31")
    e(f"v_add_u32 v{vT+1}, s{sE}, v{vLANE}")
    e(f"v_cmp_eq_u32 vcc, 0, v{vLANE}")
    e(f"s_lshl_b32 s{sE}, s{sTAGC}, 10")
    e("s_nop 0")
    e(f"v_cndmask_b32 v{vT}, v{vT+1}, v{vT}, vcc")
    e(f"v_lshlrev_b32 v{vT}, 7, v{vT}")
    e(f"v_mov_b32 v{vT+1}, s{sE}")
    e(f"s_mov_b32 s{sE}, {CT_OFF}")
    e("s_mov_b64 exec, 7")
    e(f"buffer_store_dword v{vT+1}, v{vT}, {sr(sWS,4)}, s{sE} offen{pubf}")
    e("s_mov_b64 exec, -1")
    lab("L_noinit")
    GQ = 224
    def qloads():
        for v in range(4):
            for qp in range(2):
                e(f"buffer_load_dwordx4 {vr(GQ+8*v+4*qp,4)}, v{vX}, {sr(sWS,4)}, s{sQO+v} offen offset:{qp*2048}{polf}")
    poll("q", qloads, [GQ + 4 * k for k in range(8)])
    stamp(2)
    for v in range(4):
        b0 = GQ + 8 * v
        for r in range(4):
            e(f"v_add_f32 v{b0+r}, v{b0+r}, v{b0+4+r}")
        for r in range(4):
            e(f"v_mov_b32 v{b0+4+r}, v{b0+r}")
    nop(1)
    for v in range(4):
        b0 = GQ + 8 * v
        for r in range(4):
            e(f"v_permlane32_swap_b32 v{b0+r}, v{b0+4+r}")
    nop(1)
    for v in range(4):
        b0 = GQ + 8 * v
        for r in range(4):
            e(f"v_add_f32 v{b0+r}, v{b0+r}, v{b0+4+r}")
        e(f"v_cvt_pk_bf16_f32 v{b0}, v{b0}, v{b0+1}")
        e(f"v_cvt_pk_bf16_f32 v{b0+2}, v{b0+2}, v{b0+3}")
        e(f"ds_write_b16 v{vX+1}, v{b0} offset:{QF + 256*v}")
        e(f"ds_write_b16_d16_hi v{vX+1}, v{b0} offset:{QF + 256*v + 16}")
        e(f"ds_write_b16 v{vX+1}, v{b0+2} offset:{QF + 256*v + 32}")
        e(f"ds_write_b16_d16_hi v{vX+1}, v{b0+2} offset:{QF + 256*v + 48}")
    e(f"v_mov_b32 v{vT}, 0")
    e(f"ds_write_b32 v{vT}, v{vT} offset:{FLG}")
    e("s_waitcnt lgkmcnt(0)")
    e("s_barrier")
    c("---- wo addresses: rows (wg&127)*32 + 8g + rq")
    e(f"s_and_b32 s{sA}, s2, 127")
    e(f"s_lshl_b32 s{sA}, s{sA}, 5")
    e(f"v_lshlrev_b32 v{vT}, 3, v{vG}")
    e(f"v_add_u32 v{vT}, s{sA}, v{vT}")
    e(f"v_mul_u32_u24 v{vT}, 1152, v{vT}")
    e(f"v_lshl_add_u32 v{vX+9}, v{vI}, 3, v{vT}")
    e(f"v_lshl_add_u32 v{vX+8}, v{vI}, 4, v{vT}")
    def woloads():
        for rq in range(8):
            e(f"s_mov_b32 s{sTMP}, {rq*1152}")
            for cg in range(4):
                e(f"buffer_load_dwordx4 {vr(vBIG+18*rq+4*cg,4)}, v{vX+8}, {sr(sK,4)}, s{sTMP} offen offset:{cg*256}{wldf}")
            e(f"buffer_load_dwordx2 {vr(vBIG+18*rq+16,2)}, v{vX+9}, {sr(sK,4)}, s{sTMP} offen offset:1024{wldf}")
    if wowhen == "early":
        woloads()
    c("o gather: lane = (b = lane>>5, jq = (lane>>3)&3, k = lane&7); partial j = 4i + jq")
    e(f"v_lshrrev_b32 v{vT+2}, 5, v{vLANE}")
    e(f"v_mul_u32_u24 v{vX+3}, {256*OSLOT}, v{vT+2}")
    e(f"v_bfe_u32 v{vT+3}, v{vLANE}, 3, 2")
    e(f"v_mul_u32_u24 v{vT+3}, {OSLOT}, v{vT+3}")
    e(f"v_add_u32 v{vX+10}, v{vX+3}, v{vT+3}")
    e(f"v_and_b32 v{vT+4}, 7, v{vLANE}")
    e(f"v_lshl_add_u32 v{vX+4}, v{vT+4}, 4, v{vX+10}")
    e(f"s_lshr_b32 s{sA}, s2, 7")
    e(f"s_lshl_b32 s{sA}, s{sA}, 6")
    e(f"s_add_u32 s{sA}, s{sA}, s{sB}")
    e(f"s_mul_i32 s{sA}, s{sA}, {8*OSLOT}")
    e(f"s_add_u32 s{sQO}, s{sA}, {OS_OFF}")
    e(f"s_add_u32 s{sQO+1}, s{sQO}, {4*OSLOT}")
    e(f"s_lshl_b32 s{sE}, s{sD}, 7")
    e(f"s_add_u32 s{sQO+2}, s{sQO}, s{sE}")
    e(f"s_add_u32 s{sQO+3}, s{sQO+1}, s{sE}")
    c("lds o write addr: b*128 + k*4 (+32 r) ; read addr: (n>>3)*128 + g*32")
    e(f"v_lshlrev_b32 v{vX+5}, 7, v{vT+2}")
    e(f"v_lshl_add_u32 v{vX+5}, v{vT+4}, 2, v{vX+5}")
    e(f"v_lshrrev_b32 v{vX+6}, 3, v{vI}")
    e(f"v_lshlrev_b32 v{vX+6}, 7, v{vX+6}")
    e(f"v_lshl_add_u32 v{vX+6}, v{vG}, 5, v{vX+6}")
    c("y publish: block4 offset; y gather lane offset")
    e(f"v_lshrrev_b32 v{vT}, 3, v{vI}")
    e(f"v_lshlrev_b32 v{vT}, 2, v{vT}")
    e(f"v_lshl_add_u32 v{vT}, v{vG}, 3, v{vT}")
    e(f"v_and_b32 v{vT+1}, 3, v{vI}")
    e(f"v_add_u32 v{vT}, v{vT}, v{vT+1}")
    e(f"v_lshlrev_b32 v{vX+11}, 4, v{vT}")
    e(f"v_lshrrev_b32 v{vT+2}, 2, v{vLANE}")
    e(f"v_mul_u32_u24 v{vT+2}, {YIMG}, v{vT+2}")
    e(f"v_lshl_add_u32 v{vX+7}, v{vT+1}, 4, v{vT+2}")
    e(f"s_mul_i32 s{sQO+4}, s2, {YIMG}")
    e(f"s_add_u32 s{sQO+4}, s{sQO+4}, {Y_OFF}")
    e(f"s_add_u32 s{sQO+5}, s{sQO+4}, 4096")
    if wowhen == "flag":
        c("spin on LDS flag set by stream waves near their end")
        e(f"v_mov_b32 v{vT}, 0")
        e(f"s_mov_b32 s{sPOLL}, 1000000")
        lab("L_wfl")
        e("s_sleep 4")
        e(f"ds_read_b32 v{vT+1}, v{vT} offset:{FLG}")
        e("s_waitcnt lgkmcnt(0)")
        e(f"v_readfirstlane_b32 s{sTMP}, v{vT+1}")
        e(f"s_sub_u32 s{sPOLL}, s{sPOLL}, 1")
        e(f"s_cmp_eq_u32 s{sPOLL}, 0")
        e("s_cbranch_scc1 L_wfl2")
        e(f"s_cmp_eq_u32 s{sTMP}, 0")
        e("s_cbranch_scc1 L_wfl")
        lab("L_wfl2")
        woloads()
    c("wait until this WG's stream waves have ended")
    e("s_barrier")
    if wowhen == "late":
        woloads()
    stamp(3)
    GM, GV, GW = 208, 240, 248
    def oloads():
        for i in range(2):
            e(f"buffer_load_dwordx4 {vr(GV+4*i,4)}, v{vX+4}, {sr(sWS,4)}, s{sQO+2+i} offen{polf}")
        for i in range(2):
            e(f"buffer_load_dwordx4 {vr(GW+4*i,4)}, v{vX+10}, {sr(sWS,4)}, s{sQO+i} offen offset:512{polf}")
        for j in range(8):
            e(f"buffer_load_dwordx4 {vr(GM+4*j,4)}, v{vX+3}, {sr(sWS,4)}, s{sQO+j//4} offen offset:{(j%4)*OSLOT+512}{polf}")
    poll("o", oloads, [GV, GV + 4, GW, GW + 4] + [GM + 4 * j for j in range(8)])
    stamp(4)
    c("merge")
    e(f"v_max3_f32 v{vS}, v{GM}, v{GM+4}, v{GM+8}")
    e(f"v_max3_f32 v{vS}, v{vS}, v{GM+12}, v{GM+16}")
    e(f"v_max3_f32 v{vS}, v{vS}, v{GM+20}, v{GM+24}")
    e(f"v_max_f32 v{vS}, v{vS}, v{GM+28}")
    e(f"v_sub_f32 v{GW}, v{GW}, v{vS}")
    e(f"v_sub_f32 v{GW+4}, v{GW+4}, v{vS}")
    for j in range(8):
        e(f"v_sub_f32 v{GM+4*j}, v{GM+4*j}, v{vS}")
    e(f"v_exp_f32 v{GW}, v{GW}")
    e(f"v_exp_f32 v{GW+4}, v{GW+4}")
    for j in range(8):
        e(f"v_exp_f32 v{GM+4*j}, v{GM+4*j}")
    for r in range(4):
        e(f"v_mul_f32 v{GV+r}, v{GW}, v{GV+r}")
    for r in range(4):
        e(f"v_fma_f32 v{GV+r}, v{GW+4}, v{GV+4+r}, v{GV+r}")
    e(f"v_mul_f32 v{vS+1}, v{GM}, v{GM+1}")
    for r in range(4):
        e(f"v_add_f32_dpp v{GV+r}, v{GV+r}, v{GV+r} row_ror:8 row_mask:0xf bank_mask:0xf")
    for j in range(1, 8):
        e(f"v_fma_f32 v{vS+1}, v{GM+4*j}, v{GM+4*j+1}, v{vS+1}")
    for r in range(4):
        e(f"v_mov_b32 v{GV+4+r}, v{GV+r}")
    e(f"v_rcp_f32 v{vS+1}, v{vS+1}")
    nop(1)
    for r in range(4):
        e(f"v_permlane16_swap_b32 v{GV+r}, v{GV+4+r}")
    nop(1)
    for r in range(4):
        e(f"v_add_f32 v{GV+r}, v{GV+r}, v{GV+4+r}")
    for r in range(4):
        e(f"v_mul_f32 v{GV+r}, v{vS+1}, v{GV+r}")
    for r in range(4):
        e(f"ds_write_b32 v{vX+5}, v{GV+r} offset:{OST+32*r}")
    e("s_waitcnt lgkmcnt(0)")
    OV = 208
    e(f"ds_read_b128 {vr(OV,4)}, v{vX+6} offset:{OST}")
    e(f"ds_read_b128 {vr(OV+4,4)}, v{vX+6} offset:{OST+16}")
    ACC = [32, 36, 40, 44, 8]
    BB = 216
    e("s_waitcnt lgkmcnt(1)")
    for rq in range(8):
        if rq == 4:
            e("s_waitcnt lgkmcnt(0)")
        e(f"v_cvt_pk_bf16_f32 v{OV+rq}, v{OV+rq}, v{OV+rq}")
        for k in range(4):
            e(f"v_and_b32 v{BB+4*rq+k}, v{OV+rq}, v{vM+k}")
        if rq >= 1:
            r2 = rq - 1
            for cg in range(4):
                src = "0" if r2 == 0 else vr(ACC[cg], 4)
                e(f"v_mfma_f32_16x16x32_bf16 {vr(ACC[cg],4)}, {vr(vBIG+18*r2+4*cg,4)}, {vr(BB+4*r2,4)}, {src}")
            src = "0" if r2 == 0 else vr(ACC[4], 4)
            e(f"v_mfma_f32_16x16x16_bf16 {vr(ACC[4],4)}, {vr(vBIG+18*r2+16,2)}, {vr(BB+4*r2,2)}, {src}")
    r2 = 7
    for cg in range(4):
        e(f"v_mfma_f32_16x16x32_bf16 {vr(ACC[cg],4)}, {vr(vBIG+18*r2+4*cg,4)}, {vr(BB+4*r2,4)}, {vr(ACC[cg],4)}")
    e(f"v_mfma_f32_16x16x16_bf16 {vr(ACC[4],4)}, {vr(vBIG+18*r2+16,2)}, {vr(BB+4*r2,2)}, {vr(ACC[4],4)}")
    c("---- publish y image")
    e(f"s_mov_b32 s{sM1}, 0x0f0f0f0f")
    e(f"s_mov_b32 s{sM1+1}, 0x0f0f0f0f")
    nop(3)
    for cg in range(4):
        tagquad(ACC[cg], ACC[cg])
        e(f"buffer_store_dwordx4 {vr(ACC[cg],4)}, v{vX+2}, {sr(sWS,4)}, s{sQO+4} offen offset:{cg*1024}{pubf}")
    tagquad(ACC[4], ACC[4])
    e(f"s_mov_b64 exec, {sr(sM1,2)}")
    e(f"buffer_store_dwordx4 {vr(ACC[4],4)}, v{vX+11}, {sr(sWS,4)}, s{sQO+5} offen{pubf}")
    e("s_mov_b64 exec, -1")
    stamp(5)
    e("s_cmp_ge_u32 s2, 144")
    e("s_cbranch_scc1 L_hend")
    c("---- final reduce: model = wg>=72, sigma = wg - 72*model")
    e("s_cmp_ge_u32 s2, 72")
    e(f"s_cselect_b32 s{sB}, 1, 0")
    e(f"s_mul_i32 s{sD}, s{sB}, 72")
    e(f"s_sub_u32 s{sD}, s2, s{sD}")
    e(f"s_mul_i32 s{sA}, s{sB}, {128*YIMG}")
    e(f"s_lshl_b32 s{sE}, s{sD}, 6")
    e(f"s_add_u32 s{sA}, s{sA}, s{sE}")
    e(f"s_add_u32 s{sQO}, s{sA}, {Y_OFF}")
    for i in range(1, 8):
        e(f"s_add_u32 s{sQO+i}, s{sQO}, {16*YIMG*i}")
    c("output index: gamma = 4 sigma + (lane&3)")
    e(f"s_lshl_b32 s{sE}, s{sD}, 2")
    e(f"v_and_b32 v{vX}, 3, v{vLANE}")
    e(f"v_add_u32 v{vX}, s{sE}, v{vX}")
    e(f"s_cmp_ge_u32 s{sD}, 64")
    e("s_cbranch_scc1 L_o4")
    c("gamma<256: col = (gamma>>4)*32 + 8r + (gamma&7), b = (gamma>>3)&1")
    e(f"v_lshrrev_b32 v{vX+1}, 4, v{vX}")
    e(f"v_lshlrev_b32 v{vX+1}, 5, v{vX+1}")
    e(f"v_and_b32 v{vX+3}, 7, v{vX}")
    e(f"v_add_u32 v{vX+1}, v{vX+1}, v{vX+3}")
    e(f"v_bfe_u32 v{vX+3}, v{vX}, 3, 1")
    e(f"s_mov_b32 s{sF}, 16")
    e("s_branch L_o5")
    lab("L_o4")
    c("gamma'=gamma-256: g=(gamma>>3)&3, b=(gamma>>2)&1, k=gamma&3: col = 512 + 16g + 4r + k")
    e(f"v_bfe_u32 v{vX+1}, v{vX}, 3, 2")
    e(f"v_lshlrev_b32 v{vX+1}, 4, v{vX+1}")
    e(f"v_and_b32 v{vX+3}, 3, v{vX}")
    e(f"v_add_u32 v{vX+1}, v{vX+1}, v{vX+3}")
    e(f"v_add_u32 v{vX+1}, 512, v{vX+1}")
    e(f"v_bfe_u32 v{vX+3}, v{vX}, 2, 1")
    e(f"s_mov_b32 s{sF}, 8")
    lab("L_o5")
    e(f"v_mul_u32_u24 v{vX+3}, 1152, v{vX+3}")
    e(f"v_add_u32 v{vX+1}, v{vX+1}, v{vX+3}")
    e(f"s_mul_i32 s{sE}, s{sB}, 576")
    e(f"v_add_u32 v{vX+1}, s{sE}, v{vX+1}")
    e(f"v_lshlrev_b32 v{vX+1}, 1, v{vX+1}")
    e(f"s_lshl_b32 s{sE}, s{sF}, 1")
    e(f"s_add_u32 s{sA}, s{sE}, s{sF}")
    GY = vBIG
    def yloads():
        for i in range(8):
            e(f"buffer_load_dwordx4 {vr(GY+4*i,4)}, v{vX+7}, {sr(sWS,4)}, s{sQO+i} offen{polf}")
    poll("y", yloads, [GY + 4 * i for i in range(8)])
    stamp(6)
    st = 1
    while st < 8:
        for i in range(0, 8, 2 * st):
            for r in range(4):
                e(f"v_add_f32 v{GY+4*i+r}, v{GY+4*i+r}, v{GY+4*(i+st)+r}")
        st *= 2
    for pat in ("row_ror:4", "row_ror:8"):
        nop(1)
        for r in range(4):
            e(f"v_add_f32_dpp v{GY+r}, v{GY+r}, v{GY+r} {pat} row_mask:0xf bank_mask:0xf")
    for sw in ("v_permlane16_swap_b32", "v_permlane32_swap_b32"):
        for r in range(4):
            e(f"v_mov_b32 v{GY+4+r}, v{GY+r}")
        nop(1)
        for r in range(4):
            e(f"{sw} v{GY+r}, v{GY+4+r}")
        nop(1)
        for r in range(4):
            e(f"v_add_f32 v{GY+r}, v{GY+r}, v{GY+4+r}")
    e(f"v_cvt_pk_bf16_f32 v{GY}, v{GY}, v{GY+1}")
    e(f"v_cvt_pk_bf16_f32 v{GY+2}, v{GY+2}, v{GY+3}")
    e("s_mov_b64 exec, 0xf")
    e(f"buffer_store_short v{GY}, v{vX+1}, {sr(sOUT,4)}, 0 offen")
    e(f"buffer_store_short_d16_hi v{GY}, v{vX+1}, {sr(sOUT,4)}, s{sF} offen")
    e(f"buffer_store_short v{GY+2}, v{vX+1}, {sr(sOUT,4)}, s{sE} offen")
    e(f"buffer_store_short_d16_hi v{GY+2}, v{vX+1}, {sr(sOUT,4)}, s{sA} offen")
    c("WG 0 advances the epoch")
    e("s_cmp_lg_u32 s2, 0")
    e("s_cbranch_scc1 L_hend")
    e("s_mov_b64 exec, 1")
    e(f"v_mov_b32 v{vT}, s{sTAG}")
    e(f"v_mov_b32 v{vT+1}, {EPOCH_OFF}")
    e(f"buffer_store_dword v{vT}, v{vT+1}, {sr(sWS,4)}, 0 offen")
    lab("L_hend")
    e("s_mov_b64 exec, -1")
    write_ts()
    lab("L_end")
    e("s_endpgm")

    hdr = open("concat_heads__gqa_block_cached__mha_block_cached__decode.s.ref").read().split("; Override launch")[0]
    out = hdr
    out += f"; @launch grid=(256,1,1) block=(256,1,1) lds={LDS}\n"
    out += '.amdgcn_target "amdgcn-amd-amdhsa--gfx950"\n.text\n'
    out += f".globl {KN}\n.p2align 8\n.type {KN},@function\n" + g.text()
    out += '.section .rodata,"a"\n.p2align 6\n'
    out += (f".amdhsa_kernel {KN}\n  .amdhsa_next_free_vgpr 256\n  .amdhsa_next_free_sgpr 102\n"
            f"  .amdhsa_accum_offset 256\n  .amdhsa_group_segment_fixed_size 0\n  .amdhsa_kernarg_size 104\n"
            f"  .amdhsa_user_sgpr_count 2\n  .amdhsa_user_sgpr_kernarg_segment_ptr 1\n  .amdhsa_system_sgpr_workgroup_id_x 1\n"
            f"  .amdhsa_float_denorm_mode_32 3\n"
            f".end_amdhsa_kernel\n")
    return out

if __name__ == "__main__":
    ap = argparse.ArgumentParser()
    ap.add_argument("-o", default="h.s")
    ap.add_argument("--P", type=int, default=4)
    ap.add_argument("--ld", default="nt")
    ap.add_argument("--wld", default="nt")
    ap.add_argument("--ts", action="store_true")
    ap.add_argument("--pace", type=int, default=1)
    ap.add_argument("--nohalf", action="store_true")
    ap.add_argument("--wowhen", default="flag")
    ap.add_argument("--S", type=int, default=60)
    ap.add_argument("--sleep", type=int, default=1)
    ap.add_argument("--pubf", default="sc1")
    ap.add_argument("--polf", default="sc1")
    a = ap.parse_args()
    open(a.o, "w").write(gen(P=a.P, ld=a.ld, wld=a.wld, ts=a.ts, sleep=a.sleep, pace=a.pace, halfpace=not a.nohalf,
                             wowhen=a.wowhen, S=a.S, pubf=a.pubf, polf=a.polf))
```

```python
import sys, struct, argparse, math
from gen import G, vr, sr, f2u, KN, CSCALE, NEG

EPOCH_OFF = 0
QP_OFF = 0x1000
CT_OFF = 0x50000
OS_OFF = 0x100000
OSLOT = 640
Y_OFF = 0x200000
YIMG = 4608
TS_OFF = 0x1000000
WS_BYTES = 0x2000000

def gen(P=4, ld="nt", wld="nt", ts=False, pubf="sc1", polf="sc1", maxpoll=20000, sleep=1, pace=1, halfpace=True,
        wowhen="flag", S=60, code_kb=0):
    g = G()
    e, c, lab, nop = g.e, g.c, g.lab, g.nop
    ldf = (" " + ld) if ld else ""
    wldf = (" " + wld) if wld else ""
    pubf = (" " + pubf) if pubf else ""
    polf = (" " + polf) if polf else ""
    DS = 2
    vLANE, vI, vG = 1, 2, 3
    vM = 4
    vO = 8
    vMX, vL = 12, 13
    vS = 14
    vB0, vB1 = 18, 22
    vT = 26
    vQ = 32
    vOFFK, vOFFV = 48, 49
    vX = 50
    vFF = 63
    vBIG = 64
    sW = 3
    sK, sV, sWX, sXS, sOUT, sWS = 4, 8, 12, 16, 20, 24
    sCUR, sCNT, sTMP, sTAG = 28, 29, 30, 31
    sC, sNEG, sSELLO, sSELHI = 32, 33, 34, 35
    sP = 36
    sA, sB, sD, sE, sF = 62, 63, 64, 65, 66
    sSLOT, sSTR, sCTR = 67, 68, 69
    sTB = 70
    sM1 = 74
    sTS = 76
    sTAGC, sBASE = 78, 79
    sQO = 80
    sPOLL, sKVSZ = 92, 93
    sM2 = 60
    QF, OST, FLG = 0, 1024, 1536
    LDS = 2048
    NB = (512 - 8 * S) // 2
    assert (S - P) % 2 == 0 and S - 4 >= P

    def stamp(k):
        if not ts:
            return
        e(f"s_memrealtime {sr(sTS,2)}")
        e("s_waitcnt lgkmcnt(0)")
        e(f"s_mov_b32 s{94+k}, s{sTS}")

    lab(KN)
    e("s_cmp_ge_u32 s2, 256")
    e("s_cbranch_scc1 L_end")
    if ts:
        for k in range(8):
            e(f"s_mov_b32 s{94+k}, 0")
    stamp(0)
    e(f"s_load_dwordx2 {sr(sP+24,2)}, s[0:1], 96")
    e(f"s_load_dwordx16 {sr(sP,16)}, s[0:1], 0")
    e(f"s_load_dwordx8 {sr(sP+16,8)}, s[0:1], 64")
    e(f"v_lshrrev_b32 v{vT}, 6, v0")
    e(f"v_and_b32 v{vLANE}, 63, v0")
    e(f"v_readfirstlane_b32 s{sW}, v{vT}")
    e(f"v_and_b32 v{vI}, 15, v0")
    e(f"v_lshrrev_b32 v{vG}, 4, v{vLANE}")
    e(f"s_cmp_lg_u32 s{sW}, 3")
    e("s_cbranch_scc1 L_stream")

    def common():
        for s_ in (sK, sV, sWX, sXS, sOUT, sWS):
            e(f"s_mov_b32 s{s_+3}, 0x00020000")
        e(f"s_mov_b32 s{sWS+2}, {WS_BYTES}")
    def common2():
        e("s_waitcnt lgkmcnt(0)")
        e(f"s_load_dword s{sTAG}, {sr(sP+24,2)}, {EPOCH_OFF}")
        e(f"s_mov_b32 s{sWS}, s{sP+24}")
        e(f"s_mov_b32 s{sWS+1}, s{sP+25}")
    def common3():
        e(f"v_mov_b32 v{vFF}, 0xff")
        e(f"s_mov_b32 s{sC}, 0x{f2u(CSCALE):08x}")
        e(f"s_mov_b32 s{sNEG}, 0x{NEG:08x}")
        e(f"s_mov_b32 s{sSELLO}, 0x01000100")
        e(f"s_mov_b32 s{sSELHI}, 0x03020302")

    def masks():
        e(f"v_and_b32 v{vT+4}, 1, v{vI}")
        e(f"v_lshlrev_b32 v{vT+4}, 4, v{vT+4}")
        e(f"v_mov_b32 v{vT+5}, 0xffff")
        e(f"v_lshlrev_b32 v{vT+5}, v{vT+4}, v{vT+5}")
        e(f"v_bfe_u32 v{vT+4}, v{vI}, 1, 2")
        for r in range(4):
            e(f"v_cmp_eq_u32 vcc, {r}, v{vT+4}")
            nop(2)
            e(f"v_cndmask_b32 v{vM+r}, 0, v{vT+5}, vcc")

    def mktags():
        c("tag = epoch+1 ; tag bytes from a multiplicative hash")
        e(f"s_add_u32 s{sTAG}, s{sTAG}, 1")
        e(f"s_mul_i32 s{sTB}, s{sTAG}, 0x9e3779b1")
        e(f"s_lshr_b32 s{sTB+1}, s{sTB}, 8")
        e(f"s_lshr_b32 s{sTB+2}, s{sTB}, 16")
        e(f"s_lshr_b32 s{sTB+3}, s{sTB}, 24")
        e(f"s_and_b32 s{sTAGC}, s{sTAG}, 0x3fffff")

    def tagquad(dst, src):
        for k in range(4):
            e(f"v_bfi_b32 v{dst+k}, v{vFF}, s{sTB+k}, v{src+k}")

    def write_ts():
        if not ts:
            return
        stamp(7)
        for k in range(8):
            e(f"v_mov_b32 v{vQ+k}, s{94+k}")
        e(f"s_lshl_b32 s{sA}, s2, 2")
        e(f"s_add_u32 s{sA}, s{sA}, s{sW}")
        e(f"s_lshl_b32 s{sA}, s{sA}, 5")
        e(f"s_add_u32 s{sA}, s{sA}, {TS_OFF}")
        e(f"v_mov_b32 v{vT+4}, 0")
        e("s_mov_b64 exec, 1")
        e(f"buffer_store_dwordx4 {vr(vQ,4)}, v{vT+4}, {sr(sWS,4)}, s{sA} offen")
        e(f"buffer_store_dwordx4 {vr(vQ+4,4)}, v{vT+4}, {sr(sWS,4)}, s{sA} offen offset:16")

    c("================ helper wave: model = wg>>7, head = (wg&127)>>2, qt = wg&3")
    common()
    e(f"s_bfe_u32 s{sB}, s2, 0x50002")
    e(f"s_and_b32 s{sD}, s2, 3")
    e(f"s_mul_i32 s{sE}, s{sD}, 144")
    e(f"v_mul_u32_u24 v{vT}, 36, v{vG}")
    e(f"v_add_u32 v{vT}, s{sE}, v{vT}")
    e(f"v_lshrrev_b32 v{vT+1}, 3, v{vI}")
    e(f"v_mul_u32_u24 v{vT+1}, 1152, v{vT+1}")
    e(f"v_lshl_add_u32 v{vT+1}, v{vT}, 1, v{vT+1}")
    e(f"v_lshlrev_b32 v{vT}, 13, v{vT}")
    e(f"v_lshl_add_u32 v{vT}, v{vI}, 4, v{vT}")
    e(f"s_lshl_b32 s{sTMP}, s{sB}, 8")
    e(f"s_mov_b32 s{sXS+2}, 2304")
    e(f"s_mov_b32 s{sWX+2}, {576*4096*2}")
    e(f"s_mov_b32 s{sK+2}, {576*4096*2}")
    e(f"s_mov_b32 s{sOUT+2}, 4608")
    common2()
    e(f"s_cmp_lt_u32 s2, 128")
    e(f"s_cselect_b32 s{sWX}, s{sP+6}, s{sP+16}")
    e(f"s_cselect_b32 s{sWX+1}, s{sP+7}, s{sP+17}")
    e(f"s_cselect_b32 s{sXS}, s{sP+0}, s{sP+10}")
    e(f"s_cselect_b32 s{sXS+1}, s{sP+1}, s{sP+11}")
    e(f"s_cselect_b32 s{sK}, s{sP+8}, s{sP+18}")
    e(f"s_cselect_b32 s{sK+1}, s{sP+9}, s{sP+19}")
    e(f"s_mov_b32 s{sOUT}, s{sP+20}")
    e(f"s_mov_b32 s{sOUT+1}, s{sP+21}")
    XR = 208
    for k in range(4):
        e(f"buffer_load_dwordx4 {vr(XR+4*k,4)}, v{vT+1}, {sr(sXS,4)}, 0 offen offset:{16*k}")
    e(f"buffer_load_dwordx2 {vr(XR+16,2)}, v{vT+1}, {sr(sXS,4)}, 0 offen offset:64")
    for j in range(36):
        e(f"buffer_load_dwordx4 {vr(vBIG+4*j,4)}, v{vT}, {sr(sWX,4)}, s{sTMP} offen{wldf}")
        if j < 35:
            e(f"s_add_u32 s{sTMP}, s{sTMP}, 8192")
    e("s_barrier")
    common3()
    masks()
    c("q gather soffsets: k = wg>>3, b = k>>4, kappa = k&15: base = QP + 8*kappa*1024 + b*128 ; A: +(4v+2qp)*1024 ; B: +128*1024")
    e(f"s_lshr_b32 s{sE}, s2, 3")
    e(f"s_and_b32 s{sF}, s{sE}, 15")
    e(f"s_lshr_b32 s{sE}, s{sE}, 4")
    e(f"s_lshl_b32 s{sF}, s{sF}, 13")
    e(f"s_lshl_b32 s{sE}, s{sE}, 7")
    e(f"s_add_u32 s{sF}, s{sF}, s{sE}")
    e(f"s_add_u32 s{sQO}, s{sF}, {QP_OFF}")
    e(f"s_add_u32 s{sQO+1}, s{sQO}, 4096")
    e(f"s_add_u32 s{sQO+2}, s{sQO}, {128*1024}")
    e(f"s_add_u32 s{sQO+3}, s{sQO}, {128*1024 + 4096}")
    c("gather lane offset: qh*1024 + g*256 + k*16 ; qh = lane>>5, g = (lane>>3)&3, k = lane&7")
    e(f"v_lshrrev_b32 v{vX}, 5, v{vLANE}")
    e(f"v_lshlrev_b32 v{vX}, 10, v{vX}")
    e(f"v_bfe_u32 v{vT+2}, v{vLANE}, 3, 2")
    e(f"v_lshl_add_u32 v{vX}, v{vT+2}, 8, v{vX}")
    e(f"v_and_b32 v{vT+3}, 7, v{vLANE}")
    e(f"v_lshl_add_u32 v{vX}, v{vT+3}, 4, v{vX}")
    c("lds q write addr: (32g + k)*2 (+16 r)")
    e(f"v_lshl_add_u32 v{vX+1}, v{vT+2}, 5, v{vT+3}")
    e(f"v_lshlrev_b32 v{vX+1}, 1, v{vX+1}")
    e(f"v_lshlrev_b32 v{vX+2}, 4, v{vLANE}")
    e("s_waitcnt vmcnt(30) lgkmcnt(0)")
    mktags()
    ACCQ = [vS, vO]
    for j in range(36):
        if j % 6 == 0 and j > 0:
            e(f"s_waitcnt vmcnt({30 - j})")
        B = vB0 if j % 2 == 0 else vB1
        sel = sSELLO if j % 2 == 0 else sSELHI
        tmp = vT + 4 + (j % 2)
        e(f"v_perm_b32 v{tmp}, v{XR+j//2}, v{XR+j//2}, s{sel}")
        for r in range(4):
            e(f"v_and_b32 v{B+r}, v{tmp}, v{vM+r}")
        nop(2)
        acc = ACCQ[j % 2]
        src = "0" if j < 2 else vr(acc, 4)
        e(f"v_mfma_f32_16x16x32_bf16 {vr(acc,4)}, {vr(vBIG+4*j,4)}, {vr(B,4)}, {src}")
    stamp(1)
    e(f"s_lshl_b32 s{sA}, s2, 10")
    e(f"s_add_u32 s{sA}, s{sA}, {QP_OFF}")
    nop(8)
    for r in range(4):
        e(f"v_add_f32 v{vS+r}, v{vS+r}, v{vO+r}")
    tagquad(vS, vS)
    e(f"buffer_store_dwordx4 {vr(vS,4)}, v{vX+2}, {sr(sWS,4)}, s{sA} offen{pubf}")

    def check(regs):
        first = True
        for q in regs:
            for k in (0, 2):
                e(f"v_xor_b32 v{vT}, s{sTB+k}, v{q+k}")
                e(f"v_xor_b32 v{vT+1}, s{sTB+k+1}, v{q+k+1}")
                if first:
                    e(f"v_or_b32 v{vT+2}, v{vT}, v{vT+1}")
                    first = False
                else:
                    e(f"v_or3_b32 v{vT+2}, v{vT}, v{vT+1}, v{vT+2}")
        e(f"v_and_b32 v{vT+2}, v{vFF}, v{vT+2}")
        e(f"v_cmp_ne_u32 vcc, 0, v{vT+2}")
        nop(2)
        e(f"s_cmp_eq_u64 vcc, 0")

    def poll(name, loads, regs):
        e(f"s_mov_b32 s{sPOLL}, {maxpoll}")
        lab(f"L_poll_{name}")
        loads()
        e("s_waitcnt vmcnt(0)")
        check(regs)
        e(f"s_cbranch_scc1 L_polld_{name}")
        if sleep:
            e(f"s_sleep {sleep}")
        e(f"s_sub_u32 s{sPOLL}, s{sPOLL}, 1")
        e(f"s_cmp_lg_u32 s{sPOLL}, 0")
        e(f"s_cbranch_scc1 L_poll_{name}")
        lab(f"L_polld_{name}")

    c("init ticket counters: WGs with r8==0, lanes 0..2 -> units k, 32+2k, 33+2k")
    e(f"s_and_b32 s{sE}, s2, 7")
    e(f"s_cmp_lg_u32 s{sE}, 0")
    e("s_cbranch_scc1 L_noinit")
    e(f"s_lshr_b32 s{sE}, s2, 3")
    e(f"v_mov_b32 v{vT}, s{sE}")
    e(f"s_lshl_b32 s{sE}, s{sE}, 1")
    e(f"s_add_u32 s{sE}, s{sE}, 31")
    e(f"v_add_u32 v{vT+1}, s{sE}, v{vLANE}")
    e(f"v_cmp_eq_u32 vcc, 0, v{vLANE}")
    e(f"s_lshl_b32 s{sE}, s{sTAGC}, 10")
    e("s_nop 0")
    e(f"v_cndmask_b32 v{vT}, v{vT+1}, v{vT}, vcc")
    e(f"v_lshlrev_b32 v{vT}, 7, v{vT}")
    e(f"v_mov_b32 v{vT+1}, s{sE}")
    e(f"s_mov_b32 s{sE}, {CT_OFF}")
    e("s_mov_b64 exec, 7")
    e(f"buffer_store_dword v{vT+1}, v{vT}, {sr(sWS,4)}, s{sE} offen{pubf}")
    e("s_mov_b64 exec, -1")
    lab("L_noinit")
    GQ = 224
    def qloads():
        for v in range(4):
            for qp in range(2):
                e(f"buffer_load_dwordx4 {vr(GQ+8*v+4*qp,4)}, v{vX}, {sr(sWS,4)}, s{sQO+v} offen offset:{qp*2048}{polf}")
    poll("q", qloads, [GQ + 4 * k for k in range(8)])
    stamp(2)
    for v in range(4):
        b0 = GQ + 8 * v
        for r in range(4):
            e(f"v_add_f32 v{b0+r}, v{b0+r}, v{b0+4+r}")
        for r in range(4):
            e(f"v_mov_b32 v{b0+4+r}, v{b0+r}")
    nop(1)
    for v in range(4):
        b0 = GQ + 8 * v
        for r in range(4):
            e(f"v_permlane32_swap_b32 v{b0+r}, v{b0+4+r}")
    nop(1)
    for v in range(4):
        b0 = GQ + 8 * v
        for r in range(4):
            e(f"v_add_f32 v{b0+r}, v{b0+r}, v{b0+4+r}")
        e(f"v_cvt_pk_bf16_f32 v{b0}, v{b0}, v{b0+1}")
        e(f"v_cvt_pk_bf16_f32 v{b0+2}, v{b0+2}, v{b0+3}")
        e(f"ds_write_b16 v{vX+1}, v{b0} offset:{QF + 256*v}")
        e(f"ds_write_b16_d16_hi v{vX+1}, v{b0} offset:{QF + 256*v + 16}")
        e(f"ds_write_b16 v{vX+1}, v{b0+2} offset:{QF + 256*v + 32}")
        e(f"ds_write_b16_d16_hi v{vX+1}, v{b0+2} offset:{QF + 256*v + 48}")
    e(f"v_mov_b32 v{vT}, 0")
    e(f"ds_write_b32 v{vT}, v{vT} offset:{FLG}")
    e("s_waitcnt lgkmcnt(0)")
    e("s_barrier")
    if code_kb:
        c("touch the kernel's own code so later instruction fetches hit L2")
        e(f"s_getpc_b64 {sr(sM1,2)}")
        lab("L_pc")
        e(f"s_sub_u32 s{sM1}, s{sM1}, (L_pc-{KN})")
        e(f"s_subb_u32 s{sM1+1}, s{sM1+1}, 0")
        e(f"v_mov_b32 v{vT}, v{vX+2}")
        for k in range(code_kb):
            if k and k % 4 == 0:
                e(f"v_add_u32 v{vT}, 4096, v{vT}")
            e(f"global_load_dwordx4 {vr(vBIG+4*k,4)}, v{vT}, {sr(sM1,2)} offset:{(k%4)*1024}")
    c("---- wo addresses: rows (wg&127)*32 + 8g + rq")
    e(f"s_and_b32 s{sA}, s2, 127")
    e(f"s_lshl_b32 s{sA}, s{sA}, 5")
    e(f"v_lshlrev_b32 v{vT}, 3, v{vG}")
    e(f"v_add_u32 v{vT}, s{sA}, v{vT}")
    e(f"v_mul_u32_u24 v{vT}, 1152, v{vT}")
    e(f"v_lshl_add_u32 v{vX+9}, v{vI}, 3, v{vT}")
    e(f"v_lshl_add_u32 v{vX+8}, v{vI}, 4, v{vT}")
    def woloads():
        for rq in range(8):
            e(f"s_mov_b32 s{sTMP}, {rq*1152}")
            for cg in range(4):
                e(f"buffer_load_dwordx4 {vr(vBIG+18*rq+4*cg,4)}, v{vX+8}, {sr(sK,4)}, s{sTMP} offen offset:{cg*256}{wldf}")
            e(f"buffer_load_dwordx2 {vr(vBIG+18*rq+16,2)}, v{vX+9}, {sr(sK,4)}, s{sTMP} offen offset:1024{wldf}")
    if wowhen == "early":
        woloads()
    c("o gather: lane = (b = lane>>5, jq = (lane>>3)&3, k = lane&7); partial j = 4i + jq")
    e(f"v_lshrrev_b32 v{vT+2}, 5, v{vLANE}")
    e(f"v_mul_u32_u24 v{vX+3}, {256*OSLOT}, v{vT+2}")
    e(f"v_bfe_u32 v{vT+3}, v{vLANE}, 3, 2")
    e(f"v_mul_u32_u24 v{vT+3}, {OSLOT}, v{vT+3}")
    e(f"v_add_u32 v{vX+10}, v{vX+3}, v{vT+3}")
    e(f"v_and_b32 v{vT+4}, 7, v{vLANE}")
    e(f"v_lshl_add_u32 v{vX+4}, v{vT+4}, 4, v{vX+10}")
    e(f"s_lshr_b32 s{sA}, s2, 7")
    e(f"s_lshl_b32 s{sA}, s{sA}, 6")
    e(f"s_add_u32 s{sA}, s{sA}, s{sB}")
    e(f"s_mul_i32 s{sA}, s{sA}, {8*OSLOT}")
    e(f"s_add_u32 s{sQO}, s{sA}, {OS_OFF}")
    e(f"s_add_u32 s{sQO+1}, s{sQO}, {4*OSLOT}")
    e(f"s_lshl_b32 s{sE}, s{sD}, 7")
    e(f"s_add_u32 s{sQO+2}, s{sQO}, s{sE}")
    e(f"s_add_u32 s{sQO+3}, s{sQO+1}, s{sE}")
    c("lds o write addr: b*128 + k*4 (+32 r) ; read addr: (n>>3)*128 + g*32")
    e(f"v_lshlrev_b32 v{vX+5}, 7, v{vT+2}")
    e(f"v_lshl_add_u32 v{vX+5}, v{vT+4}, 2, v{vX+5}")
    e(f"v_lshrrev_b32 v{vX+6}, 3, v{vI}")
    e(f"v_lshlrev_b32 v{vX+6}, 7, v{vX+6}")
    e(f"v_lshl_add_u32 v{vX+6}, v{vG}, 5, v{vX+6}")
    c("y publish: block4 offset; y gather lane offset")
    e(f"v_lshrrev_b32 v{vT}, 3, v{vI}")
    e(f"v_lshlrev_b32 v{vT}, 2, v{vT}")
    e(f"v_lshl_add_u32 v{vT}, v{vG}, 3, v{vT}")
    e(f"v_and_b32 v{vT+1}, 3, v{vI}")
    e(f"v_add_u32 v{vT}, v{vT}, v{vT+1}")
    e(f"v_lshlrev_b32 v{vX+11}, 4, v{vT}")
    e(f"v_lshrrev_b32 v{vT+2}, 2, v{vLANE}")
    e(f"v_mul_u32_u24 v{vT+2}, {YIMG}, v{vT+2}")
    e(f"v_lshl_add_u32 v{vX+7}, v{vT+1}, 4, v{vT+2}")
    e(f"s_mul_i32 s{sQO+4}, s2, {YIMG}")
    e(f"s_add_u32 s{sQO+4}, s{sQO+4}, {Y_OFF}")
    e(f"s_add_u32 s{sQO+5}, s{sQO+4}, 4096")
    if wowhen == "flag":
        c("spin on LDS flag set by stream waves near their end")
        e(f"v_mov_b32 v{vT}, 0")
        e(f"s_mov_b32 s{sPOLL}, 1000000")
        lab("L_wfl")
        e("s_sleep 4")
        e(f"ds_read_b32 v{vT+1}, v{vT} offset:{FLG}")
        e("s_waitcnt lgkmcnt(0)")
        e(f"v_readfirstlane_b32 s{sTMP}, v{vT+1}")
        e(f"s_sub_u32 s{sPOLL}, s{sPOLL}, 1")
        e(f"s_cmp_eq_u32 s{sPOLL}, 0")
        e("s_cbranch_scc1 L_wfl2")
        e(f"s_cmp_eq_u32 s{sTMP}, 0")
        e("s_cbranch_scc1 L_wfl")
        lab("L_wfl2")
        woloads()
    c("wait until this WG's stream waves have ended")
    e("s_barrier")
    if wowhen == "late":
        woloads()
    stamp(3)
    GM, GV, GW = 208, 240, 248
    def oloads():
        for i in range(2):
            e(f"buffer_load_dwordx4 {vr(GV+4*i,4)}, v{vX+4}, {sr(sWS,4)}, s{sQO+2+i} offen{polf}")
        for i in range(2):
            e(f"buffer_load_dwordx4 {vr(GW+4*i,4)}, v{vX+10}, {sr(sWS,4)}, s{sQO+i} offen offset:512{polf}")
        for j in range(8):
            e(f"buffer_load_dwordx4 {vr(GM+4*j,4)}, v{vX+3}, {sr(sWS,4)}, s{sQO+j//4} offen offset:{(j%4)*OSLOT+512}{polf}")
    poll("o", oloads, [GV, GV + 4, GW, GW + 4] + [GM + 4 * j for j in range(8)])
    stamp(4)
    c("merge")
    e(f"v_max3_f32 v{vS}, v{GM}, v{GM+4}, v{GM+8}")
    e(f"v_max3_f32 v{vS}, v{vS}, v{GM+12}, v{GM+16}")
    e(f"v_max3_f32 v{vS}, v{vS}, v{GM+20}, v{GM+24}")
    e(f"v_max_f32 v{vS}, v{vS}, v{GM+28}")
    e(f"v_sub_f32 v{GW}, v{GW}, v{vS}")
    e(f"v_sub_f32 v{GW+4}, v{GW+4}, v{vS}")
    for j in range(8):
        e(f"v_sub_f32 v{GM+4*j}, v{GM+4*j}, v{vS}")
    e(f"v_exp_f32 v{GW}, v{GW}")
    e(f"v_exp_f32 v{GW+4}, v{GW+4}")
    for j in range(8):
        e(f"v_exp_f32 v{GM+4*j}, v{GM+4*j}")
    for r in range(4):
        e(f"v_mul_f32 v{GV+r}, v{GW}, v{GV+r}")
    for r in range(4):
        e(f"v_fma_f32 v{GV+r}, v{GW+4}, v{GV+4+r}, v{GV+r}")
    e(f"v_mul_f32 v{vS+1}, v{GM}, v{GM+1}")
    for r in range(4):
        e(f"v_add_f32_dpp v{GV+r}, v{GV+r}, v{GV+r} row_ror:8 row_mask:0xf bank_mask:0xf")
    for j in range(1, 8):
        e(f"v_fma_f32 v{vS+1}, v{GM+4*j}, v{GM+4*j+1}, v{vS+1}")
    for r in range(4):
        e(f"v_mov_b32 v{GV+4+r}, v{GV+r}")
    e(f"v_rcp_f32 v{vS+1}, v{vS+1}")
    nop(1)
    for r in range(4):
        e(f"v_permlane16_swap_b32 v{GV+r}, v{GV+4+r}")
    nop(1)
    for r in range(4):
        e(f"v_add_f32 v{GV+r}, v{GV+r}, v{GV+4+r}")
    for r in range(4):
        e(f"v_mul_f32 v{GV+r}, v{vS+1}, v{GV+r}")
    for r in range(4):
        e(f"ds_write_b32 v{vX+5}, v{GV+r} offset:{OST+32*r}")
    e("s_waitcnt lgkmcnt(0)")
    OV = 208
    e(f"ds_read_b128 {vr(OV,4)}, v{vX+6} offset:{OST}")
    e(f"ds_read_b128 {vr(OV+4,4)}, v{vX+6} offset:{OST+16}")
    ACC = [32, 36, 40, 44, 8]
    BB = 216
    e("s_waitcnt lgkmcnt(1)")
    for rq in range(8):
        if rq == 4:
            e("s_waitcnt lgkmcnt(0)")
        e(f"v_cvt_pk_bf16_f32 v{OV+rq}, v{OV+rq}, v{OV+rq}")
        for k in range(4):
            e(f"v_and_b32 v{BB+4*rq+k}, v{OV+rq}, v{vM+k}")
        if rq >= 1:
            r2 = rq - 1
            for cg in range(4):
                src = "0" if r2 == 0 else vr(ACC[cg], 4)
                e(f"v_mfma_f32_16x16x32_bf16 {vr(ACC[cg],4)}, {vr(vBIG+18*r2+4*cg,4)}, {vr(BB+4*r2,4)}, {src}")
            src = "0" if r2 == 0 else vr(ACC[4], 4)
            e(f"v_mfma_f32_16x16x16_bf16 {vr(ACC[4],4)}, {vr(vBIG+18*r2+16,2)}, {vr(BB+4*r2,2)}, {src}")
    r2 = 7
    for cg in range(4):
        e(f"v_mfma_f32_16x16x32_bf16 {vr(ACC[cg],4)}, {vr(vBIG+18*r2+4*cg,4)}, {vr(BB+4*r2,4)}, {vr(ACC[cg],4)}")
    e(f"v_mfma_f32_16x16x16_bf16 {vr(ACC[4],4)}, {vr(vBIG+18*r2+16,2)}, {vr(BB+4*r2,2)}, {vr(ACC[4],4)}")
    c("---- publish y image")
    e(f"s_mov_b32 s{sM1}, 0x0f0f0f0f")
    e(f"s_mov_b32 s{sM1+1}, 0x0f0f0f0f")
    nop(3)
    for cg in range(4):
        tagquad(ACC[cg], ACC[cg])
        e(f"buffer_store_dwordx4 {vr(ACC[cg],4)}, v{vX+2}, {sr(sWS,4)}, s{sQO+4} offen offset:{cg*1024}{pubf}")
    tagquad(ACC[4], ACC[4])
    e(f"s_mov_b64 exec, {sr(sM1,2)}")
    e(f"buffer_store_dwordx4 {vr(ACC[4],4)}, v{vX+11}, {sr(sWS,4)}, s{sQO+5} offen{pubf}")
    e("s_mov_b64 exec, -1")
    stamp(5)
    e("s_cmp_ge_u32 s2, 144")
    e("s_cbranch_scc1 L_hend")
    c("---- final reduce: model = wg>=72, sigma = wg - 72*model")
    e("s_cmp_ge_u32 s2, 72")
    e(f"s_cselect_b32 s{sB}, 1, 0")
    e(f"s_mul_i32 s{sD}, s{sB}, 72")
    e(f"s_sub_u32 s{sD}, s2, s{sD}")
    e(f"s_mul_i32 s{sA}, s{sB}, {128*YIMG}")
    e(f"s_lshl_b32 s{sE}, s{sD}, 6")
    e(f"s_add_u32 s{sA}, s{sA}, s{sE}")
    e(f"s_add_u32 s{sQO}, s{sA}, {Y_OFF}")
    for i in range(1, 8):
        e(f"s_add_u32 s{sQO+i}, s{sQO}, {16*YIMG*i}")
    c("output index: gamma = 4 sigma + (lane&3)")
    e(f"s_lshl_b32 s{sE}, s{sD}, 2")
    e(f"v_and_b32 v{vX}, 3, v{vLANE}")
    e(f"v_add_u32 v{vX}, s{sE}, v{vX}")
    e(f"s_cmp_ge_u32 s{sD}, 64")
    e("s_cbranch_scc1 L_o4")
    c("gamma<256: col = (gamma>>4)*32 + 8r + (gamma&7), b = (gamma>>3)&1")
    e(f"v_lshrrev_b32 v{vX+1}, 4, v{vX}")
    e(f"v_lshlrev_b32 v{vX+1}, 5, v{vX+1}")
    e(f"v_and_b32 v{vX+3}, 7, v{vX}")
    e(f"v_add_u32 v{vX+1}, v{vX+1}, v{vX+3}")
    e(f"v_bfe_u32 v{vX+3}, v{vX}, 3, 1")
    e(f"s_mov_b32 s{sF}, 16")
    e("s_branch L_o5")
    lab("L_o4")
    c("gamma'=gamma-256: g=(gamma>>3)&3, b=(gamma>>2)&1, k=gamma&3: col = 512 + 16g + 4r + k")
    e(f"v_bfe_u32 v{vX+1}, v{vX}, 3, 2")
    e(f"v_lshlrev_b32 v{vX+1}, 4, v{vX+1}")
    e(f"v_and_b32 v{vX+3}, 3, v{vX}")
    e(f"v_add_u32 v{vX+1}, v{vX+1}, v{vX+3}")
    e(f"v_add_u32 v{vX+1}, 512, v{vX+1}")
    e(f"v_bfe_u32 v{vX+3}, v{vX}, 2, 1")
    e(f"s_mov_b32 s{sF}, 8")
    lab("L_o5")
    e(f"v_mul_u32_u24 v{vX+3}, 1152, v{vX+3}")
    e(f"v_add_u32 v{vX+1}, v{vX+1}, v{vX+3}")
    e(f"s_mul_i32 s{sE}, s{sB}, 576")
    e(f"v_add_u32 v{vX+1}, s{sE}, v{vX+1}")
    e(f"v_lshlrev_b32 v{vX+1}, 1, v{vX+1}")
    e(f"s_lshl_b32 s{sE}, s{sF}, 1")
    e(f"s_add_u32 s{sA}, s{sE}, s{sF}")
    GY = vBIG
    def yloads():
        for i in range(8):
            e(f"buffer_load_dwordx4 {vr(GY+4*i,4)}, v{vX+7}, {sr(sWS,4)}, s{sQO+i} offen{polf}")
    poll("y", yloads, [GY + 4 * i for i in range(8)])
    stamp(6)
    st = 1
    while st < 8:
        for i in range(0, 8, 2 * st):
            for r in range(4):
                e(f"v_add_f32 v{GY+4*i+r}, v{GY+4*i+r}, v{GY+4*(i+st)+r}")
        st *= 2
    for pat in ("row_ror:4", "row_ror:8"):
        nop(1)
        for r in range(4):
            e(f"v_add_f32_dpp v{GY+r}, v{GY+r}, v{GY+r} {pat} row_mask:0xf bank_mask:0xf")
    for sw in ("v_permlane16_swap_b32", "v_permlane32_swap_b32"):
        for r in range(4):
            e(f"v_mov_b32 v{GY+4+r}, v{GY+r}")
        nop(1)
        for r in range(4):
            e(f"{sw} v{GY+r}, v{GY+4+r}")
        nop(1)
        for r in range(4):
            e(f"v_add_f32 v{GY+r}, v{GY+r}, v{GY+4+r}")
    e(f"v_cvt_pk_bf16_f32 v{GY}, v{GY}, v{GY+1}")
    e(f"v_cvt_pk_bf16_f32 v{GY+2}, v{GY+2}, v{GY+3}")
    e("s_mov_b64 exec, 0xf")
    e(f"buffer_store_short v{GY}, v{vX+1}, {sr(sOUT,4)}, 0 offen")
    e(f"buffer_store_short_d16_hi v{GY}, v{vX+1}, {sr(sOUT,4)}, s{sF} offen")
    e(f"buffer_store_short v{GY+2}, v{vX+1}, {sr(sOUT,4)}, s{sE} offen")
    e(f"buffer_store_short_d16_hi v{GY+2}, v{vX+1}, {sr(sOUT,4)}, s{sA} offen")
    c("WG 0 advances the epoch")
    e("s_cmp_lg_u32 s2, 0")
    e("s_cbranch_scc1 L_hend")
    e("s_mov_b64 exec, 1")
    e(f"v_mov_b32 v{vT}, s{sTAG}")
    e(f"v_mov_b32 v{vT+1}, {EPOCH_OFF}")
    e(f"buffer_store_dword v{vT}, v{vT+1}, {sr(sWS,4)}, 0 offen")
    lab("L_hend")
    e("s_mov_b64 exec, -1")
    write_ts()
    e("s_endpgm")

    lab("L_stream")
    c("================ stream wave: group k = wg>>3, r8 = wg&7")
    common()
    common3()
    e(f"v_lshlrev_b32 v{vOFFV}, 10, v{vG}")
    e(f"v_lshl_add_u32 v{vOFFV}, v{vI}, 4, v{vOFFV}")
    e(f"v_lshlrev_b32 v{vOFFK}, 8, v{vI}")
    e(f"v_lshl_add_u32 v{vOFFK}, v{vG}, 4, v{vOFFK}")
    e(f"s_lshr_b32 s{sA}, s2, 3")
    e(f"s_and_b32 s{sB}, s2, 7")
    common2()
    e(f"s_cmp_eq_u32 s{sW}, 0")
    e("s_cbranch_scc0 L_strB")
    c("model A: unit = k")
    e(f"s_mov_b32 s{sK}, s{sP+2}"); e(f"s_mov_b32 s{sK+1}, s{sP+3}")
    e(f"s_mov_b32 s{sV}, s{sP+4}"); e(f"s_mov_b32 s{sV+1}, s{sP+5}")
    e(f"s_mov_b32 s{sKVSZ}, 0x4000000")
    e(f"s_lshl_b32 s{sBASE}, s{sA}, 21")
    e(f"s_lshl_b32 s{sCTR}, s{sA}, 7")
    e(f"s_lshl_b32 s{sSLOT}, s{sA}, 4")
    e(f"s_add_u32 s{sSLOT}, s{sSLOT}, s{sB}")
    e(f"s_mov_b64 {sr(sM1,2)}, -1")
    e(f"s_mov_b32 s{sQO}, 0x101")
    e(f"s_mov_b32 s{sQO+1}, 0")
    e(f"v_lshrrev_b32 v{vX}, 3, v{vI}")
    e(f"v_lshlrev_b32 v{vX+1}, 8, v{vX}")
    e(f"v_mul_u32_u24 v{vX}, {8*OSLOT}, v{vX}")
    e("s_branch L_strC")
    lab("L_strB")
    c("model B: unit = 2k + (w-1)")
    e(f"s_mov_b32 s{sK}, s{sP+12}"); e(f"s_mov_b32 s{sK+1}, s{sP+13}")
    e(f"s_mov_b32 s{sV}, s{sP+14}"); e(f"s_mov_b32 s{sV+1}, s{sP+15}")
    e(f"s_mov_b32 s{sKVSZ}, 0x8000000")
    e(f"s_lshl_b32 s{sA}, s{sA}, 1")
    e(f"s_add_u32 s{sA}, s{sA}, s{sW}")
    e(f"s_sub_u32 s{sA}, s{sA}, 1")
    e(f"s_lshl_b32 s{sBASE}, s{sA}, 21")
    e(f"s_add_u32 s{sCTR}, s{sA}, 32")
    e(f"s_lshl_b32 s{sCTR}, s{sCTR}, 7")
    e(f"s_add_u32 s{sSLOT}, s{sA}, 64")
    e(f"s_lshl_b32 s{sSLOT}, s{sSLOT}, 3")
    e(f"s_add_u32 s{sSLOT}, s{sSLOT}, s{sB}")
    e(f"s_mov_b32 s{sM1}, 0x00ff00ff")
    e(f"s_mov_b32 s{sM1+1}, 0x00ff00ff")
    e(f"s_mov_b64 {sr(sQO,2)}, 1")
    e(f"v_mov_b32 v{vX}, 0")
    e(f"s_add_u32 s{sD}, s{sW}, 1")
    e(f"s_lshl_b32 s{sD}, s{sD}, 8")
    e(f"v_mov_b32 v{vX+1}, s{sD}")
    lab("L_strC")
    e(f"s_add_u32 s{sCTR}, s{sCTR}, {CT_OFF}")
    e(f"s_lshl_b32 s{sCUR}, s{sB}, 12")
    e(f"s_mov_b32 s{sSTR}, 32768")
    e(f"s_add_u32 s{sCUR}, s{sCUR}, s{sBASE}")
    e(f"v_mov_b32 v{vX+2}, 0")
    e(f"s_mov_b32 s{sK+2}, s{sKVSZ}")
    e(f"s_mov_b32 s{sV+2}, s{sKVSZ}")
    e("s_barrier")
    BUF = [vBIG + 32 * b for b in range(P)]
    assert vBIG + 32 * P <= 256
    Q = []
    def loadK(b, name):
        for s in range(4):
            e(f"buffer_load_dwordx4 {vr(BUF[b]+4*s,4)}, v{vOFFK}, {sr(sK,4)}, s{sCUR} offen offset:{s*64}{ldf}")
        Q.append((name, 4))
    def loadV(b, name):
        for r in range(4):
            e(f"buffer_load_dwordx4 {vr(BUF[b]+16+4*r,4)}, v{vOFFV}, {sr(sV,4)}, s{sCUR} offen offset:{r*256}{ldf}")
        Q.append((name, 4))
        e(f"s_add_u32 s{sCUR}, s{sCUR}, s{sSTR}")
    def atomic(name):
        e("s_mov_b64 exec, 1")
        e(f"v_mov_b32 v{vX+3}, 1")
        e(f"buffer_atomic_add v{vX+3}, v{vX+2}, {sr(sWS,4)}, s{sCTR} offen sc0")
        e("s_mov_b64 exec, -1")
        Q.append((name, 1))
    def waitfor(name):
        idx = [a for a, _ in Q].index(name)
        n = sum(k for _, k in Q[idx+1:])
        assert n <= 63
        e(f"s_waitcnt vmcnt({n})")
        del Q[:idx + 1]
    def shiftQ(d):
        Q[:] = [(((a[0], a[1] + d) if isinstance(a[1], int) else a), k) for a, k in Q]
    for t in range(min(P, pace)):
        loadK(t, ("K", t)); loadV(t, ("V", t))
    masks()
    for r in range(4):
        e(f"v_mov_b32 v{vO+r}, 0")
    e(f"v_mov_b32 v{vMX}, s{sNEG}")
    e(f"v_mov_b32 v{vL}, 0")
    e(f"v_lshl_add_u32 v{vX+1}, v{vG}, 4, v{vX+1}")
    c("publish offsets: hs*8*OSLOT + (g*8+k)*16")
    e(f"v_and_b32 v{vX+4}, 7, v{vI}")
    e(f"v_lshl_add_u32 v{vX+4}, v{vG}, 3, v{vX+4}")
    e(f"v_lshl_add_u32 v{vX+4}, v{vX+4}, 4, v{vX}")
    e(f"s_mul_i32 s{sSLOT}, s{sSLOT}, {OSLOT}")
    e(f"s_add_u32 s{sSLOT}, s{sSLOT}, {OS_OFF}")
    for t in range(min(P, pace), P):
        if halfpace:
            e(f"s_waitcnt vmcnt({8*pace-4})")
            loadK(t, ("K", t))
            e(f"s_waitcnt vmcnt({8*pace-4})")
            loadV(t, ("V", t))
        else:
            e(f"s_waitcnt vmcnt({8*(pace-1)})")
            loadK(t, ("K", t)); loadV(t, ("V", t))
    e("s_barrier")
    for s in range(4):
        e(f"ds_read_b128 {vr(vQ+4*s,4)}, v{vX+1} offset:{QF + 64*s}")
    e("s_waitcnt lgkmcnt(0)")
    stamp(1)
    mktags()
    t0, t1, t2, t3 = vT, vT + 1, vT + 2, vT + 3
    def tile(b, t, nxt, pre=None, afterwait=None):
        K, V = BUF[b], BUF[b] + 16
        waitfor(("K", t))
        if afterwait is not None:
            afterwait()
        for s in range(4):
            src = "0" if s == 0 else vr(vS, 4)
            e(f"v_mfma_f32_16x16x32_bf16 {vr(vS,4)}, {vr(K+4*s,4)}, {vr(vQ+4*s,4)}, {src}")
        if pre is not None:
            pre()
        if nxt is not None:
            loadK(nxt[0], ("K", nxt[1]))
            nop(4)
        else:
            nop(8)
        e(f"v_max3_f32 v{t0}, v{vS}, v{vS+1}, v{vS+2}")
        e(f"v_max3_f32 v{t0}, v{t0}, v{vS+3}, v{vMX}")
        e(f"v_mov_b32 v{t1}, v{t0}")
        nop(2)
        e(f"v_permlane16_swap_b32 v{t0}, v{t1}")
        nop(1)
        e(f"v_max_f32 v{t0}, v{t0}, v{t1}")
        e(f"v_mov_b32 v{t1}, v{t0}")
        nop(2)
        e(f"v_permlane32_swap_b32 v{t0}, v{t1}")
        nop(1)
        e(f"v_max_f32 v{t0}, v{t0}, v{t1}")
        e(f"v_sub_f32 v{t1}, v{vMX}, v{t0}")
        e(f"v_mul_f32 v{t1}, s{sC}, v{t1}")
        e(f"v_exp_f32 v{t1}, v{t1}")
        e(f"v_mov_b32 v{vMX}, v{t0}")
        e(f"v_mul_f32 v{t0}, s{sC}, v{t0}")
        for r in range(4):
            e(f"v_fma_f32 v{vS+r}, v{vS+r}, s{sC}, -v{t0}")
        for r in range(4):
            e(f"v_exp_f32 v{vS+r}, v{vS+r}")
        for r in range(4):
            e(f"v_mul_f32 v{vO+r}, v{t1}, v{vO+r}")
        e(f"v_add_f32 v{t2}, v{vS}, v{vS+1}")
        e(f"v_add_f32 v{t3}, v{vS+2}, v{vS+3}")
        e(f"v_fma_f32 v{vL}, v{vL}, v{t1}, v{t2}")
        e(f"v_add_f32 v{vL}, v{vL}, v{t3}")
        for r in range(4):
            e(f"v_cvt_pk_bf16_f32 v{vS+r}, v{vS+r}, v{vS+r}")
        waitfor(("V", t))
        for r in range(4):
            B = vB0 if r % 2 == 0 else vB1
            for k in range(4):
                e(f"v_and_b32 v{B+k}, v{vS+r}, v{vM+k}")
            nop(2)
            e(f"v_mfma_f32_16x16x32_bf16 {vr(vO,4)}, {vr(V+4*r,4)}, {vr(B,4)}, {vr(vO,4)}")
        if nxt is not None:
            loadV(nxt[0], ("V", nxt[1]))
    def bufof(u):
        return u if u < P else (u - P) % DS
    for t in range(P):
        u = t + DS
        nxt = (bufof(u), u) if u >= P else None
        if nxt is not None:
            assert nxt[0] <= t
        tile(t, t, nxt)
    nloop = (S - 4 - P) // 2
    stamp(2)
    if nloop > 0:
        e(f"s_mov_b32 s{sCNT}, {nloop}")
        lab("L_loop")
        Qsave = list(Q)
        for k in range(DS):
            t = P + k
            tile(bufof(t), t, (bufof(t + DS), t + DS))
        shiftQ(-DS)
        assert Q == Qsave, (Q, Qsave)
        e(f"s_sub_u32 s{sCNT}, s{sCNT}, 1")
        e(f"s_cmp_lg_u32 s{sCNT}, 0")
        e("s_cbranch_scc1 L_loop")
        shiftQ(S - 4 - P)
    tile(bufof(S - 4), S - 4, (bufof(S - 2), S - 2), pre=lambda: atomic(("A", "a")))
    tile(bufof(S - 3), S - 3, (bufof(S - 1), S - 1))
    e(f"s_mov_b32 s{sSTR}, 4096")
    e(f"s_add_u32 s{sBASE}, s{sBASE}, {8*S*4096}")
    bx, by = bufof(S - 2), bufof(S - 1)
    X, Y = S - 2, S - 1
    lab("L_dyn")
    Qsave = list(Q)
    def ticket():
        e(f"v_readfirstlane_b32 s{sA}, v{vX+3}")
        nop(1)
        lab("L_tk")
        e(f"s_lshr_b32 s{sB}, s{sA}, 10")
        e(f"s_cmp_lg_u32 s{sB}, s{sTAGC}")
        e("s_cbranch_scc1 L_tkslow")
        e(f"s_and_b32 s{sA}, s{sA}, 1023")
        e(f"s_cmp_ge_u32 s{sA}, {NB}")
        e("s_cbranch_scc1 L_drain")
        e(f"s_lshl_b32 s{sCUR}, s{sA}, 13")
        e(f"s_add_u32 s{sCUR}, s{sCUR}, s{sBASE}")
    tile(bx, X, (bx, X + 2), pre=lambda: atomic(("A", "a")), afterwait=ticket)
    tile(by, Y, (by, Y + 2))
    shiftQ(-2)
    assert Q == Qsave, (Q, Qsave)
    e("s_branch L_dyn")
    c("slow path: counter not initialised yet -> blocking retry (bounded)")
    lab("L_tkslow")
    e(f"s_mov_b32 s{sPOLL}, {maxpoll}")
    lab("L_tkslow2")
    e("s_sleep 2")
    e("s_mov_b64 exec, 1")
    e(f"v_mov_b32 v{vX+3}, 1")
    e(f"buffer_atomic_add v{vX+3}, v{vX+2}, {sr(sWS,4)}, s{sCTR} offen sc0")
    e("s_mov_b64 exec, -1")
    e("s_waitcnt vmcnt(0)")
    e(f"v_readfirstlane_b32 s{sA}, v{vX+3}")
    e(f"s_sub_u32 s{sPOLL}, s{sPOLL}, 1")
    e(f"s_cmp_eq_u32 s{sPOLL}, 0")
    e("s_cbranch_scc1 L_drain")
    e(f"s_lshr_b32 s{sB}, s{sA}, 10")
    e(f"s_cmp_lg_u32 s{sB}, s{sTAGC}")
    e("s_cbranch_scc1 L_tkslow2")
    e("s_branch L_tk")
    lab("L_drain")
    if wowhen == "flag":
        e(f"v_mov_b32 v{t1}, 1")
        e(f"ds_write_b32 v{vX+2}, v{t1} offset:{FLG}")
    Q[:] = list(Qsave)
    tile(bx, X, None)
    tile(by, Y, None)
    assert not Q
    stamp(3)
    c("---- publish partial: O quad + {mc, l, mc, l}")
    e(f"v_mov_b32 v{t1}, v{vL}")
    e(f"v_mul_f32 v{vS}, s{sC}, v{vMX}")
    nop(1)
    e(f"v_permlane16_swap_b32 v{vL}, v{t1}")
    nop(1)
    e(f"v_add_f32 v{vL}, v{vL}, v{t1}")
    e(f"v_mov_b32 v{t1}, v{vL}")
    e(f"v_mov_b32 v{vS+2}, v{vS}")
    nop(1)
    e(f"v_permlane32_swap_b32 v{vL}, v{t1}")
    nop(1)
    tagquad(vO, vO)
    e(f"v_add_f32 v{vS+1}, v{vL}, v{t1}")
    e(f"s_mov_b64 exec, {sr(sM1,2)}")
    e(f"buffer_store_dwordx4 {vr(vO,4)}, v{vX+4}, {sr(sWS,4)}, s{sSLOT} offen{pubf}")
    e(f"s_mov_b64 exec, -1")
    e(f"v_mov_b32 v{vS+3}, v{vS+1}")
    tagquad(vS, vS)
    e(f"s_mov_b64 exec, {sr(sQO,2)}")
    e(f"buffer_store_dwordx4 {vr(vS,4)}, v{vX}, {sr(sWS,4)}, s{sSLOT} offen offset:512{pubf}")
    e(f"s_mov_b64 exec, -1")
    write_ts()
    lab("L_end")
    e("s_endpgm")

    hdr = open("concat_heads__gqa_block_cached__mha_block_cached__decode.s.ref").read().split("; Override launch")[0]
    out = hdr
    out += f"; @launch grid=(256,1,1) block=(256,1,1) lds={LDS}\n"
    out += '.amdgcn_target "amdgcn-amd-amdhsa--gfx950"\n.text\n'
    out += f".globl {KN}\n.p2align 8\n.type {KN},@function\n" + g.text()
    out += '.section .rodata,"a"\n.p2align 6\n'
    out += (f".amdhsa_kernel {KN}\n  .amdhsa_next_free_vgpr 256\n  .amdhsa_next_free_sgpr 102\n"
            f"  .amdhsa_accum_offset 256\n  .amdhsa_group_segment_fixed_size 0\n  .amdhsa_kernarg_size 104\n"
            f"  .amdhsa_user_sgpr_count 2\n  .amdhsa_user_sgpr_kernarg_segment_ptr 1\n  .amdhsa_system_sgpr_workgroup_id_x 1\n"
            f"  .amdhsa_float_denorm_mode_32 3\n"
            f".end_amdhsa_kernel\n")
    return out

if __name__ == "__main__":
    ap = argparse.ArgumentParser()
    ap.add_argument("-o", default="h.s")
    ap.add_argument("--P", type=int, default=4)
    ap.add_argument("--ld", default="nt")
    ap.add_argument("--wld", default="nt")
    ap.add_argument("--ts", action="store_true")
    ap.add_argument("--pace", type=int, default=1)
    ap.add_argument("--nohalf", action="store_true")
    ap.add_argument("--wowhen", default="flag")
    ap.add_argument("--S", type=int, default=60)
    ap.add_argument("--sleep", type=int, default=1)
    ap.add_argument("--code_kb", type=int, default=12)
    ap.add_argument("--pubf", default="sc1")
    ap.add_argument("--polf", default="sc1")
    a = ap.parse_args()
    open(a.o, "w").write(gen(P=a.P, ld=a.ld, wld=a.wld, ts=a.ts, sleep=a.sleep, pace=a.pace, halfpace=not a.nohalf,
                             wowhen=a.wowhen, S=a.S, pubf=a.pubf, polf=a.polf, code_kb=a.code_kb))
```

```python
import sys, struct, argparse, math
from gen import G, vr, sr, f2u, KN, CSCALE, NEG

EPOCH_OFF = 0
QP_OFF = 0x1000
CT_OFF = 0x50000
OS_OFF = 0x100000
OSLOT = 640
Y_OFF = 0x200000
YIMG = 4608
TS_OFF = 0x1000000
WS_BYTES = 0x2000000

def gen(P=4, ld="nt", wld="nt", ts=False, pubf="sc1", polf="sc1", maxpoll=20000, sleep=1, pace=1, halfpace=True,
        wowhen="flag", S=60, code_kb=0):
    g = G()
    e, c, lab, nop = g.e, g.c, g.lab, g.nop
    ldf = (" " + ld) if ld else ""
    wldf = (" " + wld) if wld else ""
    pubf = (" " + pubf) if pubf else ""
    polf = (" " + polf) if polf else ""
    DS = 2
    vLANE, vI, vG = 1, 2, 3
    vM = 4
    vO = 8
    vMX, vL = 12, 13
    vS = 14
    vB0, vB1 = 18, 22
    vT = 26
    vQ = 32
    vOFFK, vOFFV = 48, 49
    vX = 50
    vFF = 63
    vBIG = 64
    sW = 3
    sK, sV, sWX, sXS, sOUT, sWS = 4, 8, 12, 16, 20, 24
    sCUR, sCNT, sTMP, sTAG = 28, 29, 30, 31
    sC, sNEG, sSELLO, sSELHI = 32, 33, 34, 35
    sP = 36
    sA, sB, sD, sE, sF = 62, 63, 64, 65, 66
    sSLOT, sSTR, sCTR = 67, 68, 69
    sTB = 70
    sM1 = 74
    sTS = 76
    sTAGC, sBASE = 78, 79
    sQO = 80
    sPOLL, sKVSZ = 92, 93
    sM2 = 60
    QF, OST, FLG = 0, 1024, 1536
    LDS = 2048
    NB = (512 - 8 * S) // 2
    assert (S - P) % 2 == 0 and S - 4 >= P

    def stamp(k):
        if not ts:
            return
        e(f"s_memrealtime {sr(sTS,2)}")
        e("s_waitcnt lgkmcnt(0)")
        e(f"s_mov_b32 s{94+k}, s{sTS}")

    lab(KN)
    e("s_cmp_ge_u32 s2, 256")
    e("s_cbranch_scc1 L_end")
    if ts:
        for k in range(8):
            e(f"s_mov_b32 s{94+k}, 0")
    stamp(0)
    e(f"s_load_dwordx2 {sr(sP+24,2)}, s[0:1], 96")
    e(f"s_load_dwordx16 {sr(sP,16)}, s[0:1], 0")
    e(f"s_load_dwordx8 {sr(sP+16,8)}, s[0:1], 64")
    e(f"v_lshrrev_b32 v{vT}, 6, v0")
    e(f"v_and_b32 v{vLANE}, 63, v0")
    e(f"v_readfirstlane_b32 s{sW}, v{vT}")
    e(f"v_and_b32 v{vI}, 15, v0")
    e(f"v_lshrrev_b32 v{vG}, 4, v{vLANE}")
    e(f"s_cmp_lg_u32 s{sW}, 3")
    e("s_cbranch_scc1 L_stream")

    def common():
        for s_ in (sK, sV, sWX, sXS, sOUT, sWS):
            e(f"s_mov_b32 s{s_+3}, 0x00020000")
        e(f"s_mov_b32 s{sWS+2}, {WS_BYTES}")
    def common2():
        e("s_waitcnt lgkmcnt(0)")
        e(f"s_load_dword s{sTAG}, {sr(sP+24,2)}, {EPOCH_OFF}")
        e(f"s_mov_b32 s{sWS}, s{sP+24}")
        e(f"s_mov_b32 s{sWS+1}, s{sP+25}")
    def common3():
        e(f"v_mov_b32 v{vFF}, 0xff")
        e(f"s_mov_b32 s{sC}, 0x{f2u(CSCALE):08x}")
        e(f"s_mov_b32 s{sNEG}, 0x{NEG:08x}")
        e(f"s_mov_b32 s{sSELLO}, 0x01000100")
        e(f"s_mov_b32 s{sSELHI}, 0x03020302")

    def masks():
        e(f"v_and_b32 v{vT+4}, 1, v{vI}")
        e(f"v_lshlrev_b32 v{vT+4}, 4, v{vT+4}")
        e(f"v_mov_b32 v{vT+5}, 0xffff")
        e(f"v_lshlrev_b32 v{vT+5}, v{vT+4}, v{vT+5}")
        e(f"v_bfe_u32 v{vT+4}, v{vI}, 1, 2")
        for r in range(4):
            e(f"v_cmp_eq_u32 vcc, {r}, v{vT+4}")
            nop(2)
            e(f"v_cndmask_b32 v{vM+r}, 0, v{vT+5}, vcc")

    def mktags():
        c("tag = epoch+1 ; tag bytes from a multiplicative hash")
        e(f"s_add_u32 s{sTAG}, s{sTAG}, 1")
        e(f"s_mul_i32 s{sTB}, s{sTAG}, 0x9e3779b1")
        e(f"s_lshr_b32 s{sTB+1}, s{sTB}, 8")
        e(f"s_lshr_b32 s{sTB+2}, s{sTB}, 16")
        e(f"s_lshr_b32 s{sTB+3}, s{sTB}, 24")
        e(f"s_and_b32 s{sTAGC}, s{sTAG}, 0x3fffff")

    def tagquad(dst, src):
        for k in range(4):
            e(f"v_bfi_b32 v{dst+k}, v{vFF}, s{sTB+k}, v{src+k}")

    def write_ts():
        if not ts:
            return
        stamp(7)
        for k in range(8):
            e(f"v_mov_b32 v{vQ+k}, s{94+k}")
        e(f"s_lshl_b32 s{sA}, s2, 2")
        e(f"s_add_u32 s{sA}, s{sA}, s{sW}")
        e(f"s_lshl_b32 s{sA}, s{sA}, 5")
        e(f"s_add_u32 s{sA}, s{sA}, {TS_OFF}")
        e(f"v_mov_b32 v{vT+4}, 0")
        e("s_mov_b64 exec, 1")
        e(f"buffer_store_dwordx4 {vr(vQ,4)}, v{vT+4}, {sr(sWS,4)}, s{sA} offen")
        e(f"buffer_store_dwordx4 {vr(vQ+4,4)}, v{vT+4}, {sr(sWS,4)}, s{sA} offen offset:16")

    c("================ helper wave: model = wg>>7, head = (wg&127)>>2, qt = wg&3")
    common()
    e(f"s_bfe_u32 s{sB}, s2, 0x50002")
    e(f"s_and_b32 s{sD}, s2, 3")
    e(f"s_mul_i32 s{sE}, s{sD}, 144")
    e(f"v_mul_u32_u24 v{vT}, 36, v{vG}")
    e(f"v_add_u32 v{vT}, s{sE}, v{vT}")
    e(f"v_lshrrev_b32 v{vT+1}, 3, v{vI}")
    e(f"v_mul_u32_u24 v{vT+1}, 1152, v{vT+1}")
    e(f"v_lshl_add_u32 v{vT+1}, v{vT}, 1, v{vT+1}")
    e(f"v_lshlrev_b32 v{vT}, 13, v{vT}")
    e(f"v_lshl_add_u32 v{vT}, v{vI}, 4, v{vT}")
    e(f"s_lshl_b32 s{sTMP}, s{sB}, 8")
    e(f"s_mov_b32 s{sXS+2}, 2304")
    e(f"s_mov_b32 s{sWX+2}, {576*4096*2}")
    e(f"s_mov_b32 s{sK+2}, {576*4096*2}")
    e(f"s_mov_b32 s{sOUT+2}, 4608")
    common2()
    e(f"s_cmp_lt_u32 s2, 128")
    e(f"s_cselect_b32 s{sWX}, s{sP+6}, s{sP+16}")
    e(f"s_cselect_b32 s{sWX+1}, s{sP+7}, s{sP+17}")
    e(f"s_cselect_b32 s{sXS}, s{sP+0}, s{sP+10}")
    e(f"s_cselect_b32 s{sXS+1}, s{sP+1}, s{sP+11}")
    e(f"s_cselect_b32 s{sK}, s{sP+8}, s{sP+18}")
    e(f"s_cselect_b32 s{sK+1}, s{sP+9}, s{sP+19}")
    e(f"s_mov_b32 s{sOUT}, s{sP+20}")
    e(f"s_mov_b32 s{sOUT+1}, s{sP+21}")
    XR = 208
    for k in range(4):
        e(f"buffer_load_dwordx4 {vr(XR+4*k,4)}, v{vT+1}, {sr(sXS,4)}, 0 offen offset:{16*k}")
    e(f"buffer_load_dwordx2 {vr(XR+16,2)}, v{vT+1}, {sr(sXS,4)}, 0 offen offset:64")
    for j in range(36):
        e(f"buffer_load_dwordx4 {vr(vBIG+4*j,4)}, v{vT}, {sr(sWX,4)}, s{sTMP} offen{wldf}")
        if j < 35:
            e(f"s_add_u32 s{sTMP}, s{sTMP}, 8192")
    e("s_barrier")
    common3()
    masks()
    c("q gather soffsets: k = wg>>3, b = k>>4, kappa = k&15: base = QP + 8*kappa*1024 + b*128 ; A: +(4v+2qp)*1024 ; B: +128*1024")
    e(f"s_lshr_b32 s{sE}, s2, 3")
    e(f"s_and_b32 s{sF}, s{sE}, 15")
    e(f"s_lshr_b32 s{sE}, s{sE}, 4")
    e(f"s_lshl_b32 s{sF}, s{sF}, 13")
    e(f"s_lshl_b32 s{sE}, s{sE}, 7")
    e(f"s_add_u32 s{sF}, s{sF}, s{sE}")
    e(f"s_add_u32 s{sQO}, s{sF}, {QP_OFF}")
    e(f"s_add_u32 s{sQO+1}, s{sQO}, 4096")
    e(f"s_add_u32 s{sQO+2}, s{sQO}, {128*1024}")
    e(f"s_add_u32 s{sQO+3}, s{sQO}, {128*1024 + 4096}")
    c("gather lane offset: qh*1024 + g*256 + k*16 ; qh = lane>>5, g = (lane>>3)&3, k = lane&7")
    e(f"v_lshrrev_b32 v{vX}, 5, v{vLANE}")
    e(f"v_lshlrev_b32 v{vX}, 10, v{vX}")
    e(f"v_bfe_u32 v{vT+2}, v{vLANE}, 3, 2")
    e(f"v_lshl_add_u32 v{vX}, v{vT+2}, 8, v{vX}")
    e(f"v_and_b32 v{vT+3}, 7, v{vLANE}")
    e(f"v_lshl_add_u32 v{vX}, v{vT+3}, 4, v{vX}")
    c("lds q write addr: (32g + k)*2 (+16 r)")
    e(f"v_lshl_add_u32 v{vX+1}, v{vT+2}, 5, v{vT+3}")
    e(f"v_lshlrev_b32 v{vX+1}, 1, v{vX+1}")
    e(f"v_lshlrev_b32 v{vX+2}, 4, v{vLANE}")
    e("s_waitcnt vmcnt(30) lgkmcnt(0)")
    mktags()
    ACCQ = [vS, vO]
    for j in range(36):
        if j % 6 == 0 and j > 0:
            e(f"s_waitcnt vmcnt({30 - j})")
        B = vB0 if j % 2 == 0 else vB1
        sel = sSELLO if j % 2 == 0 else sSELHI
        tmp = vT + 4 + (j % 2)
        e(f"v_perm_b32 v{tmp}, v{XR+j//2}, v{XR+j//2}, s{sel}")
        for r in range(4):
            e(f"v_and_b32 v{B+r}, v{tmp}, v{vM+r}")
        nop(2)
        acc = ACCQ[j % 2]
        src = "0" if j < 2 else vr(acc, 4)
        e(f"v_mfma_f32_16x16x32_bf16 {vr(acc,4)}, {vr(vBIG+4*j,4)}, {vr(B,4)}, {src}")
    stamp(1)
    e(f"s_lshl_b32 s{sA}, s2, 10")
    e(f"s_add_u32 s{sA}, s{sA}, {QP_OFF}")
    nop(8)
    for r in range(4):
        e(f"v_add_f32 v{vS+r}, v{vS+r}, v{vO+r}")
    tagquad(vS, vS)
    e(f"buffer_store_dwordx4 {vr(vS,4)}, v{vX+2}, {sr(sWS,4)}, s{sA} offen{pubf}")

    def check(regs):
        first = True
        for q in regs:
            for k in (0, 2):
                e(f"v_xor_b32 v{vT}, s{sTB+k}, v{q+k}")
                e(f"v_xor_b32 v{vT+1}, s{sTB+k+1}, v{q+k+1}")
                if first:
                    e(f"v_or_b32 v{vT+2}, v{vT}, v{vT+1}")
                    first = False
                else:
                    e(f"v_or3_b32 v{vT+2}, v{vT}, v{vT+1}, v{vT+2}")
        e(f"v_and_b32 v{vT+2}, v{vFF}, v{vT+2}")
        e(f"v_cmp_ne_u32 vcc, 0, v{vT+2}")
        nop(2)
        e(f"s_cmp_eq_u64 vcc, 0")

    def poll(name, loads, regs):
        e(f"s_mov_b32 s{sPOLL}, {maxpoll}")
        lab(f"L_poll_{name}")
        loads()
        e("s_waitcnt vmcnt(0)")
        check(regs)
        e(f"s_cbranch_scc1 L_polld_{name}")
        if sleep:
            e(f"s_sleep {sleep}")
        e(f"s_sub_u32 s{sPOLL}, s{sPOLL}, 1")
        e(f"s_cmp_lg_u32 s{sPOLL}, 0")
        e(f"s_cbranch_scc1 L_poll_{name}")
        lab(f"L_polld_{name}")

    c("init ticket counters: WGs with r8==0, lanes 0..2 -> units k, 32+2k, 33+2k")
    e(f"s_and_b32 s{sE}, s2, 7")
    e(f"s_cmp_lg_u32 s{sE}, 0")
    e("s_cbranch_scc1 L_noinit")
    e(f"s_lshr_b32 s{sE}, s2, 3")
    e(f"v_mov_b32 v{vT}, s{sE}")
    e(f"s_lshl_b32 s{sE}, s{sE}, 1")
    e(f"s_add_u32 s{sE}, s{sE}, 31")
    e(f"v_add_u32 v{vT+1}, s{sE}, v{vLANE}")
    e(f"v_cmp_eq_u32 vcc, 0, v{vLANE}")
    e(f"s_lshl_b32 s{sE}, s{sTAGC}, 10")
    e("s_nop 0")
    e(f"v_cndmask_b32 v{vT}, v{vT+1}, v{vT}, vcc")
    e(f"v_lshlrev_b32 v{vT}, 7, v{vT}")
    e(f"v_mov_b32 v{vT+1}, s{sE}")
    e(f"s_mov_b32 s{sE}, {CT_OFF}")
    e("s_mov_b64 exec, 7")
    e(f"buffer_store_dword v{vT+1}, v{vT}, {sr(sWS,4)}, s{sE} offen{pubf}")
    e("s_mov_b64 exec, -1")
    lab("L_noinit")
    GQ = 224
    def qloads():
        for v in range(4):
            for qp in range(2):
                e(f"buffer_load_dwordx4 {vr(GQ+8*v+4*qp,4)}, v{vX}, {sr(sWS,4)}, s{sQO+v} offen offset:{qp*2048}{polf}")
    poll("q", qloads, [GQ + 4 * k for k in range(8)])
    stamp(2)
    for v in range(4):
        b0 = GQ + 8 * v
        for r in range(4):
            e(f"v_add_f32 v{b0+r}, v{b0+r}, v{b0+4+r}")
        for r in range(4):
            e(f"v_mov_b32 v{b0+4+r}, v{b0+r}")
    nop(1)
    for v in range(4):
        b0 = GQ + 8 * v
        for r in range(4):
            e(f"v_permlane32_swap_b32 v{b0+r}, v{b0+4+r}")
    nop(1)
    for v in range(4):
        b0 = GQ + 8 * v
        for r in range(4):
            e(f"v_add_f32 v{b0+r}, v{b0+r}, v{b0+4+r}")
        e(f"v_cvt_pk_bf16_f32 v{b0}, v{b0}, v{b0+1}")
        e(f"v_cvt_pk_bf16_f32 v{b0+2}, v{b0+2}, v{b0+3}")
        e(f"ds_write_b16 v{vX+1}, v{b0} offset:{QF + 256*v}")
        e(f"ds_write_b16_d16_hi v{vX+1}, v{b0} offset:{QF + 256*v + 16}")
        e(f"ds_write_b16 v{vX+1}, v{b0+2} offset:{QF + 256*v + 32}")
        e(f"ds_write_b16_d16_hi v{vX+1}, v{b0+2} offset:{QF + 256*v + 48}")
    e(f"v_mov_b32 v{vT}, 0")
    e(f"ds_write_b32 v{vT}, v{vT} offset:{FLG}")
    e("s_waitcnt lgkmcnt(0)")
    e("s_barrier")
    if code_kb:
        c("touch the kernel's own code so later instruction fetches hit L2")
        e(f"s_getpc_b64 {sr(sM1,2)}")
        lab("L_pc")
        e(f"s_sub_u32 s{sM1}, s{sM1}, (L_pc-{KN})")
        e(f"s_subb_u32 s{sM1+1}, s{sM1+1}, 0")
        e(f"v_mov_b32 v{vT}, v{vX+2}")
        for k in range(code_kb):
            if k and k % 4 == 0:
                e(f"v_add_u32 v{vT}, 4096, v{vT}")
            e(f"global_load_dwordx4 {vr(vBIG+4*k,4)}, v{vT}, {sr(sM1,2)} offset:{(k%4)*1024}")
    c("---- wo addresses: rows (wg&127)*32 + 8g + rq")
    e(f"s_and_b32 s{sA}, s2, 127")
    e(f"s_lshl_b32 s{sA}, s{sA}, 5")
    e(f"v_lshlrev_b32 v{vT}, 3, v{vG}")
    e(f"v_add_u32 v{vT}, s{sA}, v{vT}")
    e(f"v_mul_u32_u24 v{vT}, 1152, v{vT}")
    e(f"v_lshl_add_u32 v{vX+9}, v{vI}, 3, v{vT}")
    e(f"v_lshl_add_u32 v{vX+8}, v{vI}, 4, v{vT}")
    def woloads():
        for rq in range(8):
            e(f"s_mov_b32 s{sTMP}, {rq*1152}")
            for cg in range(4):
                e(f"buffer_load_dwordx4 {vr(vBIG+18*rq+4*cg,4)}, v{vX+8}, {sr(sK,4)}, s{sTMP} offen offset:{cg*256}{wldf}")
            e(f"buffer_load_dwordx2 {vr(vBIG+18*rq+16,2)}, v{vX+9}, {sr(sK,4)}, s{sTMP} offen offset:1024{wldf}")
    if wowhen == "early":
        woloads()
    c("o gather: lane = (b = lane>>5, jq = (lane>>3)&3, k = lane&7); partial j = 4i + jq")
    e(f"v_lshrrev_b32 v{vT+2}, 5, v{vLANE}")
    e(f"v_mul_u32_u24 v{vX+3}, {256*OSLOT}, v{vT+2}")
    e(f"v_bfe_u32 v{vT+3}, v{vLANE}, 3, 2")
    e(f"v_mul_u32_u24 v{vT+3}, {OSLOT}, v{vT+3}")
    e(f"v_add_u32 v{vX+10}, v{vX+3}, v{vT+3}")
    e(f"v_and_b32 v{vT+4}, 7, v{vLANE}")
    e(f"v_lshl_add_u32 v{vX+4}, v{vT+4}, 4, v{vX+10}")
    e(f"s_lshr_b32 s{sA}, s2, 7")
    e(f"s_lshl_b32 s{sA}, s{sA}, 6")
    e(f"s_add_u32 s{sA}, s{sA}, s{sB}")
    e(f"s_mul_i32 s{sA}, s{sA}, {8*OSLOT}")
    e(f"s_add_u32 s{sQO}, s{sA}, {OS_OFF}")
    e(f"s_add_u32 s{sQO+1}, s{sQO}, {4*OSLOT}")
    e(f"s_lshl_b32 s{sE}, s{sD}, 7")
    e(f"s_add_u32 s{sQO+2}, s{sQO}, s{sE}")
    e(f"s_add_u32 s{sQO+3}, s{sQO+1}, s{sE}")
    c("lds o write addr: b*128 + k*4 (+32 r) ; read addr: (n>>3)*128 + g*32")
    e(f"v_lshlrev_b32 v{vX+5}, 7, v{vT+2}")
    e(f"v_lshl_add_u32 v{vX+5}, v{vT+4}, 2, v{vX+5}")
    e(f"v_lshrrev_b32 v{vX+6}, 3, v{vI}")
    e(f"v_lshlrev_b32 v{vX+6}, 7, v{vX+6}")
    e(f"v_lshl_add_u32 v{vX+6}, v{vG}, 5, v{vX+6}")
    c("y publish: block4 offset; y gather lane offset")
    e(f"v_lshrrev_b32 v{vT}, 3, v{vI}")
    e(f"v_lshlrev_b32 v{vT}, 2, v{vT}")
    e(f"v_lshl_add_u32 v{vT}, v{vG}, 3, v{vT}")
    e(f"v_and_b32 v{vT+1}, 3, v{vI}")
    e(f"v_add_u32 v{vT}, v{vT}, v{vT+1}")
    e(f"v_lshlrev_b32 v{vX+11}, 4, v{vT}")
    e(f"v_lshrrev_b32 v{vT+2}, 2, v{vLANE}")
    e(f"v_mul_u32_u24 v{vT+2}, {YIMG}, v{vT+2}")
    e(f"v_lshl_add_u32 v{vX+7}, v{vT+1}, 4, v{vT+2}")
    e(f"s_mul_i32 s{sQO+4}, s2, {YIMG}")
    e(f"s_add_u32 s{sQO+4}, s{sQO+4}, {Y_OFF}")
    e(f"s_add_u32 s{sQO+5}, s{sQO+4}, 4096")
    if wowhen == "flag":
        c("spin on LDS flag set by stream waves near their end")
        e(f"v_mov_b32 v{vT}, 0")
        e(f"s_mov_b32 s{sPOLL}, 1000000")
        lab("L_wfl")
        e("s_sleep 4")
        e(f"ds_read_b32 v{vT+1}, v{vT} offset:{FLG}")
        e("s_waitcnt lgkmcnt(0)")
        e(f"v_readfirstlane_b32 s{sTMP}, v{vT+1}")
        e(f"s_sub_u32 s{sPOLL}, s{sPOLL}, 1")
        e(f"s_cmp_eq_u32 s{sPOLL}, 0")
        e("s_cbranch_scc1 L_wfl2")
        e(f"s_cmp_eq_u32 s{sTMP}, 0")
        e("s_cbranch_scc1 L_wfl")
        lab("L_wfl2")
        woloads()
    c("wait until this WG's stream waves have ended")
    e("s_barrier")
    if wowhen == "late":
        woloads()
    stamp(3)
    GM, GV, GW = 208, 240, 248
    def oloads():
        for i in range(2):
            e(f"buffer_load_dwordx4 {vr(GV+4*i,4)}, v{vX+4}, {sr(sWS,4)}, s{sQO+2+i} offen{polf}")
        for i in range(2):
            e(f"buffer_load_dwordx4 {vr(GW+4*i,4)}, v{vX+10}, {sr(sWS,4)}, s{sQO+i} offen offset:512{polf}")
        for j in range(8):
            e(f"buffer_load_dwordx4 {vr(GM+4*j,4)}, v{vX+3}, {sr(sWS,4)}, s{sQO+j//4} offen offset:{(j%4)*OSLOT+512}{polf}")
    poll("o", oloads, [GV, GV + 4, GW, GW + 4] + [GM + 4 * j for j in range(8)])
    stamp(4)
    c("merge")
    e(f"v_max3_f32 v{vS}, v{GM}, v{GM+4}, v{GM+8}")
    e(f"v_max3_f32 v{vS}, v{vS}, v{GM+12}, v{GM+16}")
    e(f"v_max3_f32 v{vS}, v{vS}, v{GM+20}, v{GM+24}")
    e(f"v_max_f32 v{vS}, v{vS}, v{GM+28}")
    e(f"v_sub_f32 v{GW}, v{GW}, v{vS}")
    e(f"v_sub_f32 v{GW+4}, v{GW+4}, v{vS}")
    for j in range(8):
        e(f"v_sub_f32 v{GM+4*j}, v{GM+4*j}, v{vS}")
    e(f"v_exp_f32 v{GW}, v{GW}")
    e(f"v_exp_f32 v{GW+4}, v{GW+4}")
    for j in range(8):
        e(f"v_exp_f32 v{GM+4*j}, v{GM+4*j}")
    for r in range(4):
        e(f"v_mul_f32 v{GV+r}, v{GW}, v{GV+r}")
    for r in range(4):
        e(f"v_fma_f32 v{GV+r}, v{GW+4}, v{GV+4+r}, v{GV+r}")
    e(f"v_mul_f32 v{vS+1}, v{GM}, v{GM+1}")
    for r in range(4):
        e(f"v_add_f32_dpp v{GV+r}, v{GV+r}, v{GV+r} row_ror:8 row_mask:0xf bank_mask:0xf")
    for j in range(1, 8):
        e(f"v_fma_f32 v{vS+1}, v{GM+4*j}, v{GM+4*j+1}, v{vS+1}")
    for r in range(4):
        e(f"v_mov_b32 v{GV+4+r}, v{GV+r}")
    e(f"v_rcp_f32 v{vS+1}, v{vS+1}")
    nop(1)
    for r in range(4):
        e(f"v_permlane16_swap_b32 v{GV+r}, v{GV+4+r}")
    nop(1)
    for r in range(4):
        e(f"v_add_f32 v{GV+r}, v{GV+r}, v{GV+4+r}")
    for r in range(4):
        e(f"v_mul_f32 v{GV+r}, v{vS+1}, v{GV+r}")
    for r in range(4):
        e(f"ds_write_b32 v{vX+5}, v{GV+r} offset:{OST+32*r}")
    e("s_waitcnt lgkmcnt(0)")
    OV = 208
    e(f"ds_read_b128 {vr(OV,4)}, v{vX+6} offset:{OST}")
    e(f"ds_read_b128 {vr(OV+4,4)}, v{vX+6} offset:{OST+16}")
    ACC = [32, 36, 40, 44, 8]
    BB = 216
    e("s_waitcnt lgkmcnt(1)")
    for rq in range(8):
        if rq == 4:
            e("s_waitcnt lgkmcnt(0)")
        e(f"v_cvt_pk_bf16_f32 v{OV+rq}, v{OV+rq}, v{OV+rq}")
        for k in range(4):
            e(f"v_and_b32 v{BB+4*rq+k}, v{OV+rq}, v{vM+k}")
        if rq >= 1:
            r2 = rq - 1
            for cg in range(4):
                src = "0" if r2 == 0 else vr(ACC[cg], 4)
                e(f"v_mfma_f32_16x16x32_bf16 {vr(ACC[cg],4)}, {vr(vBIG+18*r2+4*cg,4)}, {vr(BB+4*r2,4)}, {src}")
            src = "0" if r2 == 0 else vr(ACC[4], 4)
            e(f"v_mfma_f32_16x16x16_bf16 {vr(ACC[4],4)}, {vr(vBIG+18*r2+16,2)}, {vr(BB+4*r2,2)}, {src}")
    r2 = 7
    for cg in range(4):
        e(f"v_mfma_f32_16x16x32_bf16 {vr(ACC[cg],4)}, {vr(vBIG+18*r2+4*cg,4)}, {vr(BB+4*r2,4)}, {vr(ACC[cg],4)}")
    e(f"v_mfma_f32_16x16x16_bf16 {vr(ACC[4],4)}, {vr(vBIG+18*r2+16,2)}, {vr(BB+4*r2,2)}, {vr(ACC[4],4)}")
    c("---- publish y image")
    e(f"s_mov_b32 s{sM1}, 0x0f0f0f0f")
    e(f"s_mov_b32 s{sM1+1}, 0x0f0f0f0f")
    nop(3)
    for cg in range(4):
        tagquad(ACC[cg], ACC[cg])
        e(f"buffer_store_dwordx4 {vr(ACC[cg],4)}, v{vX+2}, {sr(sWS,4)}, s{sQO+4} offen offset:{cg*1024}{pubf}")
    tagquad(ACC[4], ACC[4])
    e(f"s_mov_b64 exec, {sr(sM1,2)}")
    e(f"buffer_store_dwordx4 {vr(ACC[4],4)}, v{vX+11}, {sr(sWS,4)}, s{sQO+5} offen{pubf}")
    e("s_mov_b64 exec, -1")
    stamp(5)
    e("s_cmp_ge_u32 s2, 144")
    e("s_cbranch_scc1 L_hend")
    c("---- final reduce: model = wg>=72, sigma = wg - 72*model")
    e("s_cmp_ge_u32 s2, 72")
    e(f"s_cselect_b32 s{sB}, 1, 0")
    e(f"s_mul_i32 s{sD}, s{sB}, 72")
    e(f"s_sub_u32 s{sD}, s2, s{sD}")
    e(f"s_mul_i32 s{sA}, s{sB}, {128*YIMG}")
    e(f"s_lshl_b32 s{sE}, s{sD}, 6")
    e(f"s_add_u32 s{sA}, s{sA}, s{sE}")
    e(f"s_add_u32 s{sQO}, s{sA}, {Y_OFF}")
    for i in range(1, 8):
        e(f"s_add_u32 s{sQO+i}, s{sQO}, {16*YIMG*i}")
    c("output index: gamma = 4 sigma + (lane&3)")
    e(f"s_lshl_b32 s{sE}, s{sD}, 2")
    e(f"v_and_b32 v{vX}, 3, v{vLANE}")
    e(f"v_add_u32 v{vX}, s{sE}, v{vX}")
    e(f"s_cmp_ge_u32 s{sD}, 64")
    e("s_cbranch_scc1 L_o4")
    c("gamma<256: col = (gamma>>4)*32 + 8r + (gamma&7), b = (gamma>>3)&1")
    e(f"v_lshrrev_b32 v{vX+1}, 4, v{vX}")
    e(f"v_lshlrev_b32 v{vX+1}, 5, v{vX+1}")
    e(f"v_and_b32 v{vX+3}, 7, v{vX}")
    e(f"v_add_u32 v{vX+1}, v{vX+1}, v{vX+3}")
    e(f"v_bfe_u32 v{vX+3}, v{vX}, 3, 1")
    e(f"s_mov_b32 s{sF}, 16")
    e("s_branch L_o5")
    lab("L_o4")
    c("gamma'=gamma-256: g=(gamma>>3)&3, b=(gamma>>2)&1, k=gamma&3: col = 512 + 16g + 4r + k")
    e(f"v_bfe_u32 v{vX+1}, v{vX}, 3, 2")
    e(f"v_lshlrev_b32 v{vX+1}, 4, v{vX+1}")
    e(f"v_and_b32 v{vX+3}, 3, v{vX}")
    e(f"v_add_u32 v{vX+1}, v{vX+1}, v{vX+3}")
    e(f"v_add_u32 v{vX+1}, 512, v{vX+1}")
    e(f"v_bfe_u32 v{vX+3}, v{vX}, 2, 1")
    e(f"s_mov_b32 s{sF}, 8")
    lab("L_o5")
    e(f"v_mul_u32_u24 v{vX+3}, 1152, v{vX+3}")
    e(f"v_add_u32 v{vX+1}, v{vX+1}, v{vX+3}")
    e(f"s_mul_i32 s{sE}, s{sB}, 576")
    e(f"v_add_u32 v{vX+1}, s{sE}, v{vX+1}")
    e(f"v_lshlrev_b32 v{vX+1}, 1, v{vX+1}")
    e(f"s_lshl_b32 s{sE}, s{sF}, 1")
    e(f"s_add_u32 s{sA}, s{sE}, s{sF}")
    GY = vBIG
    def yloads():
        for i in range(8):
            e(f"buffer_load_dwordx4 {vr(GY+4*i,4)}, v{vX+7}, {sr(sWS,4)}, s{sQO+i} offen{polf}")
    poll("y", yloads, [GY + 4 * i for i in range(8)])
    stamp(6)
    st = 1
    while st < 8:
        for i in range(0, 8, 2 * st):
            for r in range(4):
                e(f"v_add_f32 v{GY+4*i+r}, v{GY+4*i+r}, v{GY+4*(i+st)+r}")
        st *= 2
    for pat in ("row_ror:4", "row_ror:8"):
        nop(1)
        for r in range(4):
            e(f"v_add_f32_dpp v{GY+r}, v{GY+r}, v{GY+r} {pat} row_mask:0xf bank_mask:0xf")
    for sw in ("v_permlane16_swap_b32", "v_permlane32_swap_b32"):
        for r in range(4):
            e(f"v_mov_b32 v{GY+4+r}, v{GY+r}")
        nop(1)
        for r in range(4):
            e(f"{sw} v{GY+r}, v{GY+4+r}")
        nop(1)
        for r in range(4):
            e(f"v_add_f32 v{GY+r}, v{GY+r}, v{GY+4+r}")
    e(f"v_cvt_pk_bf16_f32 v{GY}, v{GY}, v{GY+1}")
    e(f"v_cvt_pk_bf16_f32 v{GY+2}, v{GY+2}, v{GY+3}")
    e("s_mov_b64 exec, 0xf")
    e(f"buffer_store_short v{GY}, v{vX+1}, {sr(sOUT,4)}, 0 offen")
    e(f"buffer_store_short_d16_hi v{GY}, v{vX+1}, {sr(sOUT,4)}, s{sF} offen")
    e(f"buffer_store_short v{GY+2}, v{vX+1}, {sr(sOUT,4)}, s{sE} offen")
    e(f"buffer_store_short_d16_hi v{GY+2}, v{vX+1}, {sr(sOUT,4)}, s{sA} offen")
    c("WG 0 advances the epoch")
    e("s_cmp_lg_u32 s2, 0")
    e("s_cbranch_scc1 L_hend")
    e("s_mov_b64 exec, 1")
    e(f"v_mov_b32 v{vT}, s{sTAG}")
    e(f"v_mov_b32 v{vT+1}, {EPOCH_OFF}")
    e(f"buffer_store_dword v{vT}, v{vT+1}, {sr(sWS,4)}, 0 offen")
    lab("L_hend")
    e("s_mov_b64 exec, -1")
    write_ts()
    e("s_endpgm")

    lab("L_stream")
    c("================ stream wave: group k = wg>>3, r8 = wg&7")
    common()
    common3()
    e(f"v_lshlrev_b32 v{vOFFV}, 10, v{vG}")
    e(f"v_lshl_add_u32 v{vOFFV}, v{vI}, 4, v{vOFFV}")
    e(f"v_lshlrev_b32 v{vOFFK}, 8, v{vI}")
    e(f"v_lshl_add_u32 v{vOFFK}, v{vG}, 4, v{vOFFK}")
    e(f"s_lshr_b32 s{sA}, s2, 3")
    e(f"s_and_b32 s{sB}, s2, 7")
    common2()
    e(f"s_cmp_eq_u32 s{sW}, 0")
    e("s_cbranch_scc0 L_strB")
    c("model A: unit = k")
    e(f"s_mov_b32 s{sK}, s{sP+2}"); e(f"s_mov_b32 s{sK+1}, s{sP+3}")
    e(f"s_mov_b32 s{sV}, s{sP+4}"); e(f"s_mov_b32 s{sV+1}, s{sP+5}")
    e(f"s_mov_b32 s{sKVSZ}, 0x4000000")
    e(f"s_lshl_b32 s{sBASE}, s{sA}, 21")
    e(f"s_lshl_b32 s{sCTR}, s{sA}, 7")
    e(f"s_lshl_b32 s{sSLOT}, s{sA}, 4")
    e(f"s_add_u32 s{sSLOT}, s{sSLOT}, s{sB}")
    e(f"s_mov_b64 {sr(sM1,2)}, -1")
    e(f"s_mov_b32 s{sQO}, 0x101")
    e(f"s_mov_b32 s{sQO+1}, 0")
    e(f"v_lshrrev_b32 v{vX}, 3, v{vI}")
    e(f"v_lshlrev_b32 v{vX+1}, 8, v{vX}")
    e(f"v_mul_u32_u24 v{vX}, {8*OSLOT}, v{vX}")
    e("s_branch L_strC")
    lab("L_strB")
    c("model B: unit = 2k + (w-1)")
    e(f"s_mov_b32 s{sK}, s{sP+12}"); e(f"s_mov_b32 s{sK+1}, s{sP+13}")
    e(f"s_mov_b32 s{sV}, s{sP+14}"); e(f"s_mov_b32 s{sV+1}, s{sP+15}")
    e(f"s_mov_b32 s{sKVSZ}, 0x8000000")
    e(f"s_lshl_b32 s{sA}, s{sA}, 1")
    e(f"s_add_u32 s{sA}, s{sA}, s{sW}")
    e(f"s_sub_u32 s{sA}, s{sA}, 1")
    e(f"s_lshl_b32 s{sBASE}, s{sA}, 21")
    e(f"s_add_u32 s{sCTR}, s{sA}, 32")
    e(f"s_lshl_b32 s{sCTR}, s{sCTR}, 7")
    e(f"s_add_u32 s{sSLOT}, s{sA}, 64")
    e(f"s_lshl_b32 s{sSLOT}, s{sSLOT}, 3")
    e(f"s_add_u32 s{sSLOT}, s{sSLOT}, s{sB}")
    e(f"s_mov_b32 s{sM1}, 0x00ff00ff")
    e(f"s_mov_b32 s{sM1+1}, 0x00ff00ff")
    e(f"s_mov_b64 {sr(sQO,2)}, 1")
    e(f"v_mov_b32 v{vX}, 0")
    e(f"s_add_u32 s{sD}, s{sW}, 1")
    e(f"s_lshl_b32 s{sD}, s{sD}, 8")
    e(f"v_mov_b32 v{vX+1}, s{sD}")
    lab("L_strC")
    e(f"s_add_u32 s{sCTR}, s{sCTR}, {CT_OFF}")
    e(f"s_lshl_b32 s{sCUR}, s{sB}, 12")
    e(f"s_mov_b32 s{sSTR}, 32768")
    e(f"s_add_u32 s{sCUR}, s{sCUR}, s{sBASE}")
    e(f"v_mov_b32 v{vX+2}, 0")
    e(f"s_mov_b32 s{sK+2}, s{sKVSZ}")
    e(f"s_mov_b32 s{sV+2}, s{sKVSZ}")
    e("s_barrier")
    BUF = [vBIG + 32 * b for b in range(P)]
    assert vBIG + 32 * P <= 256
    Q = []
    def loadK(b, name):
        for s in range(4):
            e(f"buffer_load_dwordx4 {vr(BUF[b]+4*s,4)}, v{vOFFK}, {sr(sK,4)}, s{sCUR} offen offset:{s*64}{ldf}")
        Q.append((name, 4))
    def loadV(b, name):
        for r in range(4):
            e(f"buffer_load_dwordx4 {vr(BUF[b]+16+4*r,4)}, v{vOFFV}, {sr(sV,4)}, s{sCUR} offen offset:{r*256}{ldf}")
        Q.append((name, 4))
        e(f"s_add_u32 s{sCUR}, s{sCUR}, s{sSTR}")
    def atomic(name):
        e("s_mov_b64 exec, 1")
        e(f"v_mov_b32 v{vX+3}, 1")
        e(f"buffer_atomic_add v{vX+3}, v{vX+2}, {sr(sWS,4)}, s{sCTR} offen sc0")
        e("s_mov_b64 exec, -1")
        Q.append((name, 1))
    def waitfor(name):
        idx = [a for a, _ in Q].index(name)
        n = sum(k for _, k in Q[idx+1:])
        assert n <= 63
        e(f"s_waitcnt vmcnt({n})")
        del Q[:idx + 1]
    def shiftQ(d):
        Q[:] = [(((a[0], a[1] + d) if isinstance(a[1], int) else a), k) for a, k in Q]
    for t in range(min(P, pace)):
        loadK(t, ("K", t)); loadV(t, ("V", t))
    masks()
    for r in range(4):
        e(f"v_mov_b32 v{vO+r}, 0")
    e(f"v_mov_b32 v{vMX}, s{sNEG}")
    e(f"v_mov_b32 v{vL}, 0")
    e(f"v_lshl_add_u32 v{vX+1}, v{vG}, 4, v{vX+1}")
    c("publish offsets: hs*8*OSLOT + (g*8+k)*16")
    e(f"v_and_b32 v{vX+4}, 7, v{vI}")
    e(f"v_lshl_add_u32 v{vX+4}, v{vG}, 3, v{vX+4}")
    e(f"v_lshl_add_u32 v{vX+4}, v{vX+4}, 4, v{vX}")
    e(f"s_mul_i32 s{sSLOT}, s{sSLOT}, {OSLOT}")
    e(f"s_add_u32 s{sSLOT}, s{sSLOT}, {OS_OFF}")
    for t in range(min(P, pace), P):
        if halfpace:
            e(f"s_waitcnt vmcnt({8*pace-4})")
            loadK(t, ("K", t))
            e(f"s_waitcnt vmcnt({8*pace-4})")
            loadV(t, ("V", t))
        else:
            e(f"s_waitcnt vmcnt({8*(pace-1)})")
            loadK(t, ("K", t)); loadV(t, ("V", t))
    e("s_barrier")
    for s in range(4):
        e(f"ds_read_b128 {vr(vQ+4*s,4)}, v{vX+1} offset:{QF + 64*s}")
    e("s_waitcnt lgkmcnt(0)")
    stamp(1)
    mktags()
    t0, t1, t2, t3 = vT, vT + 1, vT + 2, vT + 3
    def tile(b, t, nxt, pre=None, afterwait=None):
        K, V = BUF[b], BUF[b] + 16
        waitfor(("K", t))
        if afterwait is not None:
            afterwait()
        for s in range(4):
            src = "0" if s == 0 else vr(vS, 4)
            e(f"v_mfma_f32_16x16x32_bf16 {vr(vS,4)}, {vr(K+4*s,4)}, {vr(vQ+4*s,4)}, {src}")
        if pre is not None:
            pre()
        if nxt is not None:
            loadK(nxt[0], ("K", nxt[1]))
            nop(4)
        else:
            nop(8)
        e(f"v_max3_f32 v{t0}, v{vS}, v{vS+1}, v{vS+2}")
        e(f"v_max3_f32 v{t0}, v{t0}, v{vS+3}, v{vMX}")
        e(f"v_mov_b32 v{t1}, v{t0}")
        nop(2)
        e(f"v_permlane16_swap_b32 v{t0}, v{t1}")
        nop(1)
        e(f"v_max_f32 v{t0}, v{t0}, v{t1}")
        e(f"v_mov_b32 v{t1}, v{t0}")
        nop(2)
        e(f"v_permlane32_swap_b32 v{t0}, v{t1}")
        nop(1)
        e(f"v_max_f32 v{t0}, v{t0}, v{t1}")
        e(f"v_sub_f32 v{t1}, v{vMX}, v{t0}")
        e(f"v_mul_f32 v{t1}, s{sC}, v{t1}")
        e(f"v_exp_f32 v{t1}, v{t1}")
        e(f"v_mov_b32 v{vMX}, v{t0}")
        e(f"v_mul_f32 v{t0}, s{sC}, v{t0}")
        for r in range(4):
            e(f"v_fma_f32 v{vS+r}, v{vS+r}, s{sC}, -v{t0}")
        for r in range(4):
            e(f"v_exp_f32 v{vS+r}, v{vS+r}")
        for r in range(4):
            e(f"v_mul_f32 v{vO+r}, v{t1}, v{vO+r}")
        e(f"v_add_f32 v{t2}, v{vS}, v{vS+1}")
        e(f"v_add_f32 v{t3}, v{vS+2}, v{vS+3}")
        e(f"v_fma_f32 v{vL}, v{vL}, v{t1}, v{t2}")
        e(f"v_add_f32 v{vL}, v{vL}, v{t3}")
        for r in range(4):
            e(f"v_cvt_pk_bf16_f32 v{vS+r}, v{vS+r}, v{vS+r}")
        waitfor(("V", t))
        for r in range(4):
            B = vB0 if r % 2 == 0 else vB1
            for k in range(4):
                e(f"v_and_b32 v{B+k}, v{vS+r}, v{vM+k}")
            nop(2)
            e(f"v_mfma_f32_16x16x32_bf16 {vr(vO,4)}, {vr(V+4*r,4)}, {vr(B,4)}, {vr(vO,4)}")
        if nxt is not None:
            loadV(nxt[0], ("V", nxt[1]))
    def bufof(u):
        return u if u < P else (u - P) % DS
    for t in range(P):
        u = t + DS
        nxt = (bufof(u), u) if u >= P else None
        if nxt is not None:
            assert nxt[0] <= t
        tile(t, t, nxt)
    nloop = (S - 4 - P) // 2
    stamp(2)
    if nloop > 0:
        e(f"s_mov_b32 s{sCNT}, {nloop}")
        lab("L_loop")
        Qsave = list(Q)
        for k in range(DS):
            t = P + k
            tile(bufof(t), t, (bufof(t + DS), t + DS))
        shiftQ(-DS)
        assert Q == Qsave, (Q, Qsave)
        e(f"s_sub_u32 s{sCNT}, s{sCNT}, 1")
        e(f"s_cmp_lg_u32 s{sCNT}, 0")
        e("s_cbranch_scc1 L_loop")
        shiftQ(S - 4 - P)
    tile(bufof(S - 4), S - 4, (bufof(S - 2), S - 2), pre=lambda: atomic(("A", "a")))
    tile(bufof(S - 3), S - 3, (bufof(S - 1), S - 1))
    e(f"s_mov_b32 s{sSTR}, 4096")
    e(f"s_add_u32 s{sBASE}, s{sBASE}, {8*S*4096}")
    bx, by = bufof(S - 2), bufof(S - 1)
    X, Y = S - 2, S - 1
    lab("L_dyn")
    Qsave = list(Q)
    def ticket():
        e(f"v_readfirstlane_b32 s{sA}, v{vX+3}")
        nop(1)
        lab("L_tk")
        e(f"s_lshr_b32 s{sB}, s{sA}, 10")
        e(f"s_cmp_lg_u32 s{sB}, s{sTAGC}")
        e("s_cbranch_scc1 L_tkslow")
        e(f"s_and_b32 s{sA}, s{sA}, 1023")
        e(f"s_cmp_ge_u32 s{sA}, {NB}")
        e("s_cbranch_scc1 L_drain")
        e(f"s_lshl_b32 s{sCUR}, s{sA}, 13")
        e(f"s_add_u32 s{sCUR}, s{sCUR}, s{sBASE}")
    tile(bx, X, (bx, X + 2), pre=lambda: atomic(("A", "a")), afterwait=ticket)
    tile(by, Y, (by, Y + 2))
    shiftQ(-2)
    assert Q == Qsave, (Q, Qsave)
    e("s_branch L_dyn")
    c("slow path: counter not initialised yet -> blocking retry (bounded)")
    lab("L_tkslow")
    e(f"s_mov_b32 s{sPOLL}, {maxpoll}")
    lab("L_tkslow2")
    e("s_sleep 2")
    e("s_mov_b64 exec, 1")
    e(f"v_mov_b32 v{vX+3}, 1")
    e(f"buffer_atomic_add v{vX+3}, v{vX+2}, {sr(sWS,4)}, s{sCTR} offen sc0")
    e("s_mov_b64 exec, -1")
    e("s_waitcnt vmcnt(0)")
    e(f"v_readfirstlane_b32 s{sA}, v{vX+3}")
    e(f"s_sub_u32 s{sPOLL}, s{sPOLL}, 1")
    e(f"s_cmp_eq_u32 s{sPOLL}, 0")
    e("s_cbranch_scc1 L_drain")
    e(f"s_lshr_b32 s{sB}, s{sA}, 10")
    e(f"s_cmp_lg_u32 s{sB}, s{sTAGC}")
    e("s_cbranch_scc1 L_tkslow2")
    e("s_branch L_tk")
    lab("L_drain")
    if wowhen == "flag":
        e(f"v_mov_b32 v{t1}, 1")
        e(f"ds_write_b32 v{vX+2}, v{t1} offset:{FLG}")
    Q[:] = list(Qsave)
    tile(bx, X, None)
    tile(by, Y, None)
    assert not Q
    stamp(3)
    c("---- publish partial: O quad + {mc', l, mc', l}; O and l are rescaled to the tagged value mc' so the merge is exact")
    e(f"v_mov_b32 v{t1}, v{vL}")
    e(f"v_mul_f32 v{t2}, s{sC}, v{vMX}")
    e(f"v_bfi_b32 v{vS}, v{vFF}, s{sTB}, v{t2}")
    e(f"v_permlane16_swap_b32 v{vL}, v{t1}")
    e(f"v_sub_f32 v{t3}, v{t2}, v{vS}")
    e(f"v_add_f32 v{vL}, v{vL}, v{t1}")
    e(f"v_mov_b32 v{t1}, v{vL}")
    e(f"v_exp_f32 v{t3}, v{t3}")
    e(f"v_bfi_b32 v{vS+2}, v{vFF}, s{sTB+2}, v{t2}")
    e(f"v_permlane32_swap_b32 v{vL}, v{t1}")
    nop(1)
    for r in range(4):
        e(f"v_mul_f32 v{vO+r}, v{t3}, v{vO+r}")
    tagquad(vO, vO)
    e(f"v_add_f32 v{vS+1}, v{vL}, v{t1}")
    e(f"s_mov_b64 exec, {sr(sM1,2)}")
    e(f"buffer_store_dwordx4 {vr(vO,4)}, v{vX+4}, {sr(sWS,4)}, s{sSLOT} offen{pubf}")
    e(f"s_mov_b64 exec, -1")
    e(f"v_mul_f32 v{vS+1}, v{t3}, v{vS+1}")
    e(f"v_bfi_b32 v{vS+3}, v{vFF}, s{sTB+3}, v{vS+1}")
    e(f"v_bfi_b32 v{vS+1}, v{vFF}, s{sTB+1}, v{vS+1}")
    e(f"s_mov_b64 exec, {sr(sQO,2)}")
    e(f"buffer_store_dwordx4 {vr(vS,4)}, v{vX}, {sr(sWS,4)}, s{sSLOT} offen offset:512{pubf}")
    e(f"s_mov_b64 exec, -1")
    write_ts()
    lab("L_end")
    e("s_endpgm")

    hdr = open("concat_heads__gqa_block_cached__mha_block_cached__decode.s.ref").read().split("; Override launch")[0]
    out = hdr
    out += f"; @launch grid=(256,1,1) block=(256,1,1) lds={LDS}\n"
    out += '.amdgcn_target "amdgcn-amd-amdhsa--gfx950"\n.text\n'
    out += f".globl {KN}\n.p2align 8\n.type {KN},@function\n" + g.text()
    out += '.section .rodata,"a"\n.p2align 6\n'
    out += (f".amdhsa_kernel {KN}\n  .amdhsa_next_free_vgpr 256\n  .amdhsa_next_free_sgpr 102\n"
            f"  .amdhsa_accum_offset 256\n  .amdhsa_group_segment_fixed_size 0\n  .amdhsa_kernarg_size 104\n"
            f"  .amdhsa_user_sgpr_count 2\n  .amdhsa_user_sgpr_kernarg_segment_ptr 1\n  .amdhsa_system_sgpr_workgroup_id_x 1\n"
            f"  .amdhsa_float_denorm_mode_32 3\n"
            f".end_amdhsa_kernel\n")
    return out

if __name__ == "__main__":
    ap = argparse.ArgumentParser()
    ap.add_argument("-o", default="h.s")
    ap.add_argument("--P", type=int, default=4)
    ap.add_argument("--ld", default="nt")
    ap.add_argument("--wld", default="nt")
    ap.add_argument("--ts", action="store_true")
    ap.add_argument("--pace", type=int, default=1)
    ap.add_argument("--nohalf", action="store_true")
    ap.add_argument("--wowhen", default="flag")
    ap.add_argument("--S", type=int, default=60)
    ap.add_argument("--sleep", type=int, default=1)
    ap.add_argument("--code_kb", type=int, default=12)
    ap.add_argument("--pubf", default="sc1")
    ap.add_argument("--polf", default="sc1")
    a = ap.parse_args()
    open(a.o, "w").write(gen(P=a.P, ld=a.ld, wld=a.wld, ts=a.ts, sleep=a.sleep, pace=a.pace, halfpace=not a.nohalf,
                             wowhen=a.wowhen, S=a.S, pubf=a.pubf, polf=a.polf, code_kb=a.code_kb))
```
